```python
import torch

def _softmax(x, axis=-1):
    return torch.softmax(x, dim=axis)

def _gelu(x):
    return torch.nn.functional.gelu(x, approximate='tanh')

def _silu(x):
    return torch.nn.functional.silu(x)

def _sigmoid(x):
    return torch.sigmoid(x)

def _layernorm(x, axis=-1, eps=1e-05):
    m = x.mean(dim=axis, keepdim=True)
    v = x.var(dim=axis, keepdim=True, unbiased=False)
    return (x - m) / torch.sqrt(v + eps)

def _scatter_add(tgt, idx, src, axis=0):
    return tgt.clone().index_add_(axis, idx, src)

def _segment_sum(src, seg, n):
    out = torch.zeros((n,) + src.shape[1:], dtype=src.dtype)
    return out.index_add_(0, seg, src)

def _pad(x, pw):
    flat = tuple((v for pair in reversed(pw) for v in pair))
    return torch.nn.functional.pad(x, flat)
kernel_name = 'adaLN_cond__sliding_block_cached__glu_gated_glu__decode'

def setup_inputs():

    _w = lambda a: (lambda t: t.to(torch.bfloat16) if t.is_floating_point() else t)(torch.as_tensor(a))

    def _A_setup():
        B, Sq, D = (8, 1, 512)
        Hq, Hkv, Sk, Dh = (32, 32, 4096, 128)
        assert Hq % Hkv == 0, (Hq, Hkv)
        return {'x': _w((lambda *s: torch.randn(*s, dtype=torch.bfloat16) * 0.05)(B, Sq, D)), 'k_cache': _w((lambda *s: torch.randn(*s, dtype=torch.bfloat16) * 3.2)(B, Hkv, Sk, Dh)), 'v_cache': _w((lambda *s: torch.randn(*s, dtype=torch.bfloat16) * 0.4)(B, Hkv, Sk, Dh)), 'wq': _w((lambda *s: torch.randn(*s, dtype=torch.bfloat16) * 3.2)(D, Hq * Dh) * D ** (-0.5)), 'wo': _w((lambda *s: torch.randn(*s, dtype=torch.bfloat16) * 0.4)(Hq * Dh, D) * (Hq * Dh) ** (-0.5))}
    _A_in = _A_setup()

    def _B_setup():
        B, S, D, F = (8, 1, 512, 1376)
        return {'x': _w((lambda *s: torch.randn(*s, dtype=torch.bfloat16) * 0.05)(B, S, D)), 'w_gate': _w((lambda *s: torch.randn(*s, dtype=torch.bfloat16) * 0.05)(D, F)), 'w_up': _w((lambda *s: torch.randn(*s, dtype=torch.bfloat16) * 0.05)(D, F)), 'w_down': _w((lambda *s: torch.randn(*s, dtype=torch.bfloat16) * 0.05)(F, D))}
    _B_in = _B_setup()
    return {'A_x': _A_in['x'], 'A_k_cache': _A_in['k_cache'], 'A_v_cache': _A_in['v_cache'], 'A_wq': _A_in['wq'], 'A_wo': _A_in['wo'], 'B_x': _B_in['x'], 'B_w_gate': _B_in['w_gate'], 'B_w_up': _B_in['w_up'], 'B_w_down': _B_in['w_down'], 'c': _w((lambda *s: torch.randn(*s, dtype=torch.bfloat16) * 0.1)(8, 512) * 8.0), 'w_mod': _w((lambda *s: torch.randn(*s, dtype=torch.bfloat16) * 0.1)(512, 6 * 512) * 512 ** (-0.5) * 8.0)}

def reference(A_x, A_k_cache, A_v_cache, A_wq, A_wo, B_x, B_w_gate, B_w_up, B_w_down, c, w_mod):

    def _A_ref(x, k_cache, v_cache, wq, wo):
        B, Sq, D = x.shape
        Hq, Dh = (32, 128)
        Hkv, Sk = (k_cache.shape[1], k_cache.shape[2])
        W = min(4096, max(256, Sk // 4))
        rep = Hq // Hkv
        q = (lambda x, *d: x.permute(*d))((x @ wq).reshape(B, Sq, Hq, Dh), 0, 2, 1, 3)
        k = (lambda x, n, axis: torch.repeat_interleave(x, n, dim=axis))(k_cache[:, :, Sk - W:, :], rep, axis=1)
        v = (lambda x, n, axis: torch.repeat_interleave(x, n, dim=axis))(v_cache[:, :, Sk - W:, :], rep, axis=1)
        scores = torch.einsum('bhqd,bhkd->bhqk', q, k) * Dh ** (-0.5)
        p = _softmax(scores, axis=-1)
        o = torch.einsum('bhqk,bhkd->bhqd', p, v)
        return (lambda x, *d: x.permute(*d))(o, 0, 2, 1, 3).reshape(B, Sq, Hq * Dh) @ wo

    def _B_ref(x, w_gate, w_up, w_down):
        g = torch.einsum('bsd,df->bsf', x, w_gate)
        u = torch.einsum('bsd,df->bsf', x, w_up)
        h = _sigmoid(g) * u
        return torch.einsum('bsf,fd->bsd', h, w_down)
    x = A_x
    mod = (_silu(c) @ w_mod).reshape(c.shape[0], 6, 1, -1)
    sa, ca, ga, sb, cb, gb = (mod[:, 0].clone(), mod[:, 1].clone(), mod[:, 2].clone(), mod[:, 3].clone(), mod[:, 4].clone(), mod[:, 5].clone())
    h = _layernorm(x, axis=-1) * (1 + ca) + sa
    x = x + ga * _A_ref(h, A_k_cache, A_v_cache, A_wq, A_wo)
    h = _layernorm(x, axis=-1) * (1 + cb) + sb
    x = x + gb * _B_ref(h, B_w_gate, B_w_up, B_w_down)
    return x
```

```python
import sys

NAME = 'adaLN_cond__sliding_block_cached__glu_gated_glu__decode'

WS_MOD = 0x0
WS_BLK = 0x4000
BP = 12288
WS_P1 = 0x100000
WS_X1 = 0x140000
WS_PRG = 0x144000
GAP = WS_P1 - (WS_BLK + 8 * BP)
WS_RACE = 0x148000
WS_P2 = 0x150000
WS_END = WS_P2 + 8 * 65536
WS_STAMP = 0x3000000
L_ML = 0x100
L_CNT = 0x140
L_FLG = 0x144
L_CNT2 = 0x14c
L_RT = 0x148
L_GATE = 0x150
L_ST = 0x000
L_OP = 0x200
L_OB = 0xA00
L_HH = 0xE00
L_BIG = 0x1000
L_RED = L_BIG
L_EXT = 0x11000
L_H2 = L_EXT
L_DN = L_EXT + 8192
RED_W = 8192
RED_PITCH = 272

WS = 's[36:39]'
SA = 's[40:43]'
SB = 's[44:47]'
SC = 's[48:51]'
SD = 's[52:55]'
SE = 's[56:59]'
CAP = 0x100000
DPPF = 'row_mask:0xf bank_mask:0xf'


DOC = """
Written with tools/gen.py (hand-written generator).  One launch, workgroup (b, h) = (id >> 5, id & 31), 8 waves:
  waves 0-3 (S) stream the K and V windows through a register ring: q.K by v_dot2, true-max softmax, p.V by MFMA
  waves 4-7 (H) do the small GEMMs and keep this head's wo rows in registers
Extra roles: id 0-47 mod = silu(c) @ w_mod; 48-111 LN1 + q = h @ wq; 112-143 clear the hand-off slots;
  144-207 reduce the wo partials (x1) and the w_down partials (output); 43 of 208-255 LN2 + gate/up/down slices.
Hand-offs through d_ws: this launch first fills every slot with 0xffffffff (write-through, acknowledged), then raises
  flags in d_debug; writers and readers look at those flags before they touch a slot (the last inboxes are instead
  filled by their reader before it sends the value their writers wait for), and after that every data
  dword is its own flag (write-through stores, cache-bypassing polls), so nothing depends on placement or on what
  d_ws held before.  All spins are bounded.  Loads whose result is dropped only warm L2 for the current launch.
Which of the cleared slots a reader uses is a permutation that all workgroups derive from the same d_debug flags; it
  puts a slot on the memory half its reader reaches faster (probed within the launch) and only affects speed.
"""


class Gen:
    def __init__(self,
                 D=5, D0=4, DS=((0, 4), (20, 5), (90, 6)), D2=7, FU=(40, 30, 50, 30, 0), FN=20, FX=40,
                 FA=64, FU2=(112, 0, 112, 80, 80, 80), DE=8, JE=120, XC=False,
                 NL=15, budget=30, QJ=None, JJ=None,
                 perm=(0, 1, 5, 6, 7, 4, 2, 8, 9, 3), cols=(4, 8, 16, 32, 64, 128, 256, 512),
                 HP=208, HE=6, HM=(94, 8), HL=12, HN=2, HG=2, HC=1, GP=2, G0=16, GT=0, GTF=0, GB=0, GS=6, GC=12, TK0=24, TKN=32, TKW=144,
                 HD=3, HDF=3, FD=1, QD=3, PD=2, DD=8, NPRE=0, NS=0, NT=0, downfirst=True, LD=2, LDP=2, LDR=2, LDW=0, LDS_=None, hprio=2, P0=True, P3='d', prefetch=True,
                 wperm=(1, 2, 3, 4, 5, 6), wcw=(0, 0), wcols=(0,) * 8,
                 kvflags='nt', wflags='', gflags='', fflags='', outflags='sc1', cflags='sc1', pflags='sc1', hpflags='',
                 JC=32, pol=None, X2=2, SK=True, NQ=(1, 0, 1), SN=0, XF=2, AL=0, TP=None,
                 modsleep=16, flagsleep=40, PP=(4, 2, 3), PG=(1, 1, 1), PM=(0, 0, 0), PS=(0, 0, 0), PI=(0, 0, 0),
                 diag=0, calib=0, calibwg=None, amp=None, jitter=None, abl='', TB=None):
        self.__dict__.update(locals())
        self.L = []
        self.uid = 0
        self.RG = 62
        assert not self.LD or self.NL >= 10
        if self.QJ is None:
            self.QJ = self.RG + self.NL - max(self.D, self.D2) - 2

    def e(self, s):
        self.L.append(s)

    def fin(self):
        self.e('s_branch L_fin' if (self.diag or self.amp or self.calib) else 's_endpgm')

    def lab(self, base):
        self.uid += 1
        return f'L_{base}_{self.uid}'

    def srd(self, name, lo, hi, nbytes):
        b = int(name[2:name.index(':')])
        e = self.e
        e(f's_mov_b32 s{b}, {lo}'); e(f's_mov_b32 s{b+1}, {hi}')
        e(f's_mov_b32 s{b+2}, {nbytes:#x}'); e(f's_mov_b32 s{b+3}, 0x20000')

    def ts(self, i):
        if self.diag == 2:
            self.e(f's_memrealtime s[{80+2*i}:{81+2*i}]')

    def stamp(self, i, mode=1):
        if self.amp and mode == 1 and i == self.amp[0]:
            self.e('s_memrealtime s[96:97]')
        if self.diag == mode:
            self.e('s_memrealtime s[78:79]')
            self.e('s_waitcnt lgkmcnt(0)')
            self.e(f's_mov_b32 s{80+i}, s78')

    def rnd(self, d, s):
        self.e(f'v_cvt_pk_bf16_f32 v{d}, 0, v{s}')

    def sent_check(self, regs, t):
        e = self.e
        regs = list(regs)
        if len(regs) == 1:
            e(f'v_cmp_eq_u32 vcc, -1, v{regs[0]}')
            return
        if len(regs) == 2:
            e(f'v_max_u32 v{t}, v{regs[0]}, v{regs[1]}'); rest = []
        else:
            e(f'v_max3_u32 v{t}, v{regs[0]}, v{regs[1]}, v{regs[2]}'); rest = regs[3:]
        while rest:
            if len(rest) >= 2:
                e(f'v_max3_u32 v{t}, v{t}, v{rest[0]}, v{rest[1]}'); rest = rest[2:]
            else:
                e(f'v_max_u32 v{t}, v{t}, v{rest[0]}'); rest = rest[1:]
        e(f'v_cmp_eq_u32 vcc, -1, v{t}')

    def poll(self, issue, wait, check, sleep=0, again=None):
        e = self.e
        lp, lx = self.lab('poll'), self.lab('pollx')
        e('s_mov_b32 s75, 0')
        e(f'{lp}:')
        issue()
        e(wait)
        check()
        e(f's_cbranch_vccz {lx}')
        if again:
            again()
        if sleep:
            e(f's_sleep {sleep}')
        e('s_add_u32 s75, s75, 1'); e(f's_cmp_lt_u32 s75, {CAP * (16 if "lgkm" in wait else 1):#x}'); e(f's_cbranch_scc1 {lp}')
        e(f'{lx}:')

    def ppoll(self, k, load, nld, base, t):
        e = self.e
        P = self.PP[k]
        regs = range(base, base + 4 * nld)
        if self.PI[k]:
            e(f's_sleep {self.PI[k]}')

        def issue():
            for i in range(nld):
                load(i)
        for i in range(P - 1):
            issue()
            e(f's_sleep {self.PG[k]}')
        if self.PM[k] < 2:
            self.poll(issue, f's_waitcnt vmcnt({nld*(P-1)})', lambda: self.sent_check(regs, t), sleep=self.PS[k],
                      again=(lambda: e('s_mov_b64 exec, vcc')) if self.PM[k] else None)
            if self.PM[k]:
                e('s_mov_b64 exec, -1')
            return
        m = lambda i: f's[{4+2*i}:{5+2*i}]'
        for i in range(nld):
            e(f's_mov_b64 {m(i)}, -1')

        def missue():
            for i in range(nld):
                l = self.lab('mk')
                e(f's_mov_b64 exec, {m(i)}')
                if P == 1:
                    e(f's_cbranch_execz {l}')
                load(i)
                e(f'{l}:')
            e('s_mov_b64 exec, -1')

        def mcheck():
            for i in range(nld):
                r = base + 4 * i
                e(f'v_max3_u32 v{t}, v{r}, v{r+1}, v{r+2}'); e(f'v_max_u32 v{t}, v{t}, v{r+3}')
                e(f'v_cmp_eq_u32 {m(i)}, -1, v{t}')
            e(f's_or_b64 vcc, {m(0)}, {m(1)}')
            for i in range(2, nld):
                e(f's_or_b64 vcc, vcc, {m(i)}')
        self.poll(missue, f's_waitcnt vmcnt({nld*(P-1)})', mcheck, sleep=self.PS[k])

    def allreduce_rows(self, op, v, t):
        e = self.e
        e(f'v_mov_b32 v{t}, v{v}'); e('s_nop 1')
        e(f'v_permlane16_swap_b32 v{v}, v{t}'); e('s_nop 1')
        e(f'{op} v{v}, v{v}, v{t}')
        e(f'v_mov_b32 v{t}, v{v}'); e('s_nop 1')
        e(f'v_permlane32_swap_b32 v{v}, v{t}'); e('s_nop 1')
        e(f'{op} v{v}, v{v}, v{t}')

    def build(self):
        e = self.e
        e(f'; @launch grid=(256,1,1) block=(512,1,1) lds={L_EXT + 4096 * max(self.NL, 4)}')
        for l in DOC.strip().split('\n'):
            e('; ' + l)
        e('.amdgcn_target "amdgcn-amd-amdhsa--gfx950"')
        e('.text'); e(f'.globl {NAME}_kernel'); e('.p2align 8'); e(f'.type {NAME}_kernel,@function')
        e(f'{NAME}_kernel:')
        e('L_code_begin:')
        if self.amp:
            e('s_mov_b32 s96, 0')
        if self.diag or self.calib or self.amp or self.TB:
            e('s_memrealtime s[100:101]')
        e('s_load_dwordx16 s[4:19], s[0:1], 0')
        e('s_load_dwordx8 s[20:27], s[0:1], 64')
        e('s_load_dwordx4 s[28:31], s[0:1], 96')
        e('s_cmpk_ge_u32 s2, 256'); e('s_cbranch_scc1 L_end')
        if self.jitter:
            mul, mask = self.jitter
            e(f's_mul_i32 s64, s2, {mul}'); e('s_lshr_b32 s64, s64, 5'); e(f's_and_b32 s64, s64, {mask}')
            e('L_jit:'); e('s_sub_u32 s64, s64, 1'); e('s_cbranch_scc1 L_jitx'); e('s_sleep 64'); e('s_branch L_jit'); e('L_jitx:')
        e('v_lshrrev_b32 v1, 6, v0')
        e('v_and_b32 v0, 63, v0')
        e('v_readfirstlane_b32 s3, v1')
        e('v_lshlrev_b32 v1, 4, v0')
        if self.diag:
            for i in range(81, 100):
                e(f's_mov_b32 s{i}, 0')
        e('s_lshl_b32 s64, s2, 20'); e('s_add_u32 s64, s64, 0xC0000')
        e('s_mov_b32 s42, 0x40000'); e('s_mov_b32 s43, 0x20000')
        e('s_and_b32 s34, s3, 3')
        e('s_cmp_ge_u32 s3, 4')
        e('s_cbranch_scc1 L_helper')
        self.s_wave(0)
        self.h_wave()
        if 't' in self.abl:
            e('s_branch L_fin')
        self.tail()
        self.fin()
        self.s_wave(1)
        e('L_fin:')
        if self.amp:
            ev, E0, lo, hi = self.amp
            self.stamp(9)
            e('s_waitcnt lgkmcnt(0)')
            e(f's_sub_u32 s94, s3, {lo}'); e(f's_cmp_lt_u32 s94, {hi-lo}'); e('s_cbranch_scc0 L_end')
            e('s_cmp_eq_u32 s96, 0'); e('s_cbranch_scc1 L_end')
            e('s_sub_u32 s96, s96, s100'); e('s_mul_i32 s96, s96, 10'); e(f's_add_u32 s96, s96, {3000 - int(E0*1000)}')
            e('s_min_i32 s96, s96, 30000')
            e('L_amp:'); e('s_sleep 4'); e('s_memrealtime s[94:95]'); e('s_waitcnt lgkmcnt(0)')
            e('s_sub_u32 s94, s94, s100'); e('s_cmp_lt_i32 s94, s96'); e('s_cbranch_scc1 L_amp')
        if self.calib:
            e('s_cmp_eq_u32 s3, 5'); e('s_cbranch_scc0 L_end')
            if self.calibwg is not None:
                e(f's_cmp_eq_u32 s2, {self.calibwg}'); e('s_cbranch_scc0 L_end')
            e('L_cal:'); e('s_memrealtime s[80:81]'); e('s_waitcnt lgkmcnt(0)')
            e('s_sub_u32 s80, s80, s100'); e(f's_cmp_lt_u32 s80, {self.calib*100}'); e('s_cbranch_scc1 L_cal')
        if self.diag:
            e('s_lshl_b32 s64, s2, 3'); e('s_add_u32 s64, s64, s3'); e('s_lshl_b32 s64, s64, 7'); e(f's_add_u32 s64, s64, {WS_STAMP}')
            e('v_lshlrev_b32 v2, 2, v0')
            self.stamp(9)
            if self.diag > 1:
                e('s_memrealtime s[98:99]'); e('s_waitcnt lgkmcnt(0)')
            for i in range(20):
                e(f'v_writelane_b32 v4, s{80+i}, {i}')
            e('s_getreg_b32 s80, hwreg(HW_REG_HW_ID)'); e('s_getreg_b32 s81, hwreg(HW_REG_XCC_ID)')
            e('v_writelane_b32 v4, s80, 20'); e('v_writelane_b32 v4, s81, 21')
            e('s_sleep 127'); e('s_sleep 127')
            e('s_mov_b64 exec, 0x3fffff')
            e(f'buffer_store_dword v4, v2, {WS}, s64 offen')
        e('L_end:')
        e('s_endpgm')
        e('L_code_end:')
        e('.section .rodata,"a"'); e('.p2align 6'); e(f'.amdhsa_kernel {NAME}_kernel')
        e('  .amdhsa_next_free_vgpr 256'); e('  .amdhsa_next_free_sgpr 102'); e('  .amdhsa_accum_offset 256')
        e('  .amdhsa_group_segment_fixed_size 0'); e('  .amdhsa_kernarg_size 112'); e('  .amdhsa_user_sgpr_count 2')
        e('  .amdhsa_user_sgpr_kernarg_segment_ptr 1'); e('  .amdhsa_system_sgpr_workgroup_id_x 1')
        e('  .amdhsa_float_denorm_mode_32 3')
        e('.end_amdhsa_kernel')
        return '\n'.join(self.L) + '\n'

    def s_wave(self, part):
        if part == 1:
            self.L += self.s_rest
            return
        head = self.L
        e = self.e
        D = self.D

        pm = self.perm
        if pm[:2] != (0, 1):
            e('v_and_b32 v1, 0xf0, v1')
            e('v_bfe_u32 v2, v0, 4, 1'); e(f'v_lshl_add_u32 v1, v2, {8+pm[0]}, v1')
            e('v_lshrrev_b32 v2, 5, v0'); e(f'v_lshl_add_u32 v1, v2, {8+pm[1]}, v1')
        if pm[3] == pm[2] + 1:
            e(f's_lshl_b32 s65, s34, {8+pm[2]}')
        else:
            e('s_and_b32 s65, s34, 1'); e(f's_lshl_b32 s65, s65, {8+pm[2]}'); e('s_lshr_b32 s66, s34, 1'); e(f's_lshl_b32 s66, s66, {8+pm[3]}')
            e('s_or_b32 s65, s65, s66')
        keep = 0x3ff & ~((1 << pm[0]) | (1 << pm[1]))
        cols = [c & keep for c in self.cols]
        groups = {}
        for b, c in enumerate(cols):
            for t in range(10):
                if c >> t & 1:
                    groups.setdefault(t - b, []).append(b)
        for sh, bits in groups.items():
            if len(bits) == 8:
                e(f's_lshl_b32 s66, s2, {8+sh}')
            else:
                e(f's_and_b32 s66, s2, {sum(1 << b for b in bits)}'); e(f's_lshl_b32 s66, s66, {8+sh}')
            e('s_xor_b32 s65, s65, s66')
        koff = lambda j: sum(((j >> b) & 1) << (8 + pm[4 + b]) for b in range(6))
        e('s_waitcnt lgkmcnt(0)')
        e('s_add_u32 s40, s6, s64'); e('s_addc_u32 s41, s7, 0')
        e('s_add_u32 s44, s8, s64'); e('s_addc_u32 s45, s9, 0')
        D2 = self.D2 if any(self.FU) else D

        def set_boost(FU, FN, FX, t):
            e('s_cmp_eq_u32 s74, -1'); e(f's_mov_b32 s69, {FU[3]}'); e(f's_cselect_b32 s69, {FN}, s69')
            e(f's_cmp_lt_u32 s2, {112+self.JC}'); e(f's_cselect_b32 s69, {FU[4]}, s69')
            e('s_cmp_lt_u32 s2, 112'); e(f's_cselect_b32 s69, {FU[2]}, s69')
            e('s_cmp_lt_u32 s2, 48'); e(f's_cselect_b32 s69, {FU[1]}, s69')
            e('s_cmp_lt_u32 s2, 16'); e(f's_cselect_b32 s69, {FU[0]}, s69')
            if FX:
                e(f's_and_b32 {t}, s72, 7'); e(f's_cmp_eq_u32 {t}, 3'); e(f's_cselect_b32 {t}, {FX}, 0')
                e('s_cmp_lt_u32 s2, 112'); e(f's_cselect_b32 {t}, {t}, 0'); e(f's_add_u32 s69, s69, {t}')

        def late_setup():
            self.common()
            e('s_mov_b32 s46, 0x40000'); e('s_mov_b32 s47, 0x20000')
            if D2 != D:
                set_boost(self.FU, self.FN, self.FX, 's66')
        RG = self.RG
        free = [8 + 4 * i for i in range(RG)]
        slot = {}
        Q = 4
        sc = [None] * 16
        st = {}

        def q_load():
            e(f's_mul_i32 s68, s32, {BP}'); e('s_lshl_b32 s67, s33, 8'); e('s_add_u32 s68, s68, s67'); e(f's_add_u32 s68, s68, {WS_BLK}')
            e('v_and_b32 v2, 0xf0, v1')
            e(f'buffer_load_dwordx4 v[4:7], v2, {WS}, s68 offen sc1')

        def j_load(fl):
            e(f'v_and_b32 v2, {self.JC-1}, v0'); e('v_lshlrev_b32 v2, 2, v2')
            e(f'buffer_load_dword v3, v2, {SD}, 0 offen offset:128 {fl}')

        def j_check():
            l = self.lab('jf')
            e('v_cmp_eq_u32 vcc, 0, v3'); e(f's_cbranch_vccz {l}')
            self.poll(lambda: j_load('sc1'), 's_waitcnt vmcnt(0)', lambda: e('v_cmp_eq_u32 vcc, 0, v3'), sleep=self.flagsleep)
            e(f'{l}:')

        def w_q():
            self.stamp(1)
            l = self.lab('q')
            self.sent_check(range(4, 8), 3)
            e(f's_cbranch_vccz {l}')
            if 'q' in self.abl or 'e' in self.abl:
                e(f's_branch {l}')
            self.poll(q_load, 's_waitcnt vmcnt(0)', lambda: self.sent_check(range(4, 8), 3))
            e(f'{l}:')
            e('s_mov_b32 s66, 0x3db504f3')
            self.stamp(2)

        inlds = {}

        def fetch(tiles):
            n = 0
            for i in tiles:
                if i in inlds:
                    if 'LA' not in st:
                        st['LA'] = free.pop(0)
                        e(f'v_lshl_add_u32 v{st["LA"]}, v0, 4, s70')
                    r = free.pop(0)
                    slot[i] = r
                    e(f'ds_read_b128 v[{r}:{r+3}], v{st["LA"]} offset:{1024*inlds.pop(i)}')
                    n += 1
            if n:
                e('s_waitcnt lgkmcnt(0)')

        def w_qk(G):
            fetch(range(4 * G, 4 * G + 4))
            K = [slot[4 * G + t] for t in range(4)]
            if G == 0:
                regs = [K[t] + d for t in range(4) for d in range(4)]
                regs.remove(K[2] + 1)
                order = [K[2] + 1] + regs
                for i in range(16):
                    sc[i] = order[i]
            u = sc[G]
            for d in range(4):
                for t in range(4):
                    if d == 0:
                        e(f'v_dot2_f32_bf16 v{K[t]}, v{K[t]}, v{Q}, 0')
                    else:
                        e(f'v_dot2c_f32_bf16 v{K[t]}, v{K[t]+d}, v{Q+d}')
            T0, T1 = K[0] + 1, K[1] + 1
            e(f'v_add_f32_dpp v{T0}, v{K[0]}, v{K[0]} row_ror:8 row_mask:0xf bank_mask:0x3')
            e(f'v_add_f32_dpp v{T1}, v{K[1]}, v{K[1]} row_ror:8 row_mask:0xf bank_mask:0x3')
            e(f'v_add_f32_dpp v{T0}, v{K[2]}, v{K[2]} row_ror:8 row_mask:0xf bank_mask:0xc')
            e(f'v_add_f32_dpp v{T1}, v{K[3]}, v{K[3]} row_ror:8 row_mask:0xf bank_mask:0xc')
            e('s_nop 0')
            e(f'v_add_f32_dpp v{u}, v{T0}, v{T0} row_shl:4 row_mask:0xf bank_mask:0x5')
            e(f'v_add_f32_dpp v{u}, v{T1}, v{T1} row_shr:4 row_mask:0xf bank_mask:0xa')
            e('s_nop 1')
            e(f'v_add_f32_dpp v{u}, v{u}, v{u} quad_perm:[1,0,3,2] {DPPF}')
            e('s_nop 1')
            e(f'v_add_f32_dpp v{u}, v{u}, v{u} quad_perm:[2,3,0,1] {DPPF}')
            self.rnd(u, u)
            e(f'v_mul_f32 v{u}, s66, v{u}')
            self.rnd(u, u)
            if G > 0:
                free.extend(K)

        def w_sm1():
            st['T'] = [free.pop(0) for _ in range(5)]
            e(f'v_max3_f32 v2, v{sc[0]}, v{sc[1]}, v{sc[2]}')
            for i in range(3, 15, 2):
                e(f'v_max3_f32 v2, v2, v{sc[i]}, v{sc[i+1]}')
            e(f'v_max_f32 v2, v2, v{sc[15]}')
            e('v_max_f32 v2, 0xff7fffff, v2')
            e('s_nop 1')
            e(f'v_max_f32_dpp v2, v2, v2 row_ror:4 {DPPF}'); e('s_nop 1')
            e(f'v_max_f32_dpp v2, v2, v2 row_ror:8 {DPPF}')
            self.allreduce_rows('v_max_f32', 2, 3)
            e('s_mov_b32 s67, 0x3fb8aa3b')
            for i in range(16):
                e(f'v_sub_f32 v{sc[i]}, v{sc[i]}, v2')
            for i in range(16):
                e(f'v_mul_f32 v{sc[i]}, s67, v{sc[i]}')

        def w_sm2():
            t = st['T'][0]
            for i in range(16):
                e(f'v_exp_f32 v{sc[i]}, v{sc[i]}')
            e(f'v_add_f32 v3, v{sc[0]}, v{sc[1]}')
            for i in range(2, 16):
                e(f'v_add_f32 v3, v3, v{sc[i]}')
            e('s_nop 1')
            e(f'v_add_f32_dpp v3, v3, v3 row_ror:4 {DPPF}'); e('s_nop 1')
            e(f'v_add_f32_dpp v3, v3, v3 row_ror:8 {DPPF}')
            self.allreduce_rows('v_add_f32', 3, t)
            e('v_min_u32 v3, -2, v3')
            e('s_lshl_b32 s68, s34, 3'); e(f'v_mov_b32 v{t}, s68')
            e(f'ds_write_b64 v{t}, v[2:3] offset:{L_ML}')
            e(f'v_and_b32 v{t+1}, 15, v0'); e(f'v_lshrrev_b32 v{t+2}, 1, v{t+1}')
            e(f'v_and_b32 v{t+1}, 1, v0'); e(f'v_lshlrev_b32 v{t+1}, 4, v{t+1}')
            e(f'v_mov_b32 v{t+3}, 0xffff'); e(f'v_lshlrev_b32 v{t+1}, v{t+1}, v{t+3}')
            for j in range(4):
                e(f'v_cmp_eq_u32 vcc, {j}, v{t+2}'); e('s_nop 1'); e(f'v_cndmask_b32 v{4+j}, 0, v{t+1}, vcc')

        def w_sm3():
            a, b, t = st['T'][1], st['T'][2], st['T'][0]
            e(f'v_mov_b32 v{t}, 0')

            def issue():
                e(f'ds_read_b128 v[{a}:{a+3}], v{t} offset:{L_ML}')
                e(f'ds_read_b128 v[{b}:{b+3}], v{t} offset:{L_ML+16}')
            if 'k' not in self.abl:
                self.poll(issue, 's_waitcnt lgkmcnt(0)', lambda: self.sent_check([a + 1, a + 3, b + 1, b + 3], t + 1))
            M = t + 1
            e(f'v_max3_f32 v{M}, v{a}, v{a+2}, v{b}'); e(f'v_max_f32 v{M}, v{M}, v{b+2}')
            ms = [a, a + 2, b, b + 2, 2]
            for m in ms:
                e(f'v_sub_f32 v{m}, v{m}, v{M}')
            for m in ms:
                e(f'v_mul_f32 v{m}, s67, v{m}')
            for m in ms:
                e(f'v_exp_f32 v{m}, v{m}')
            e(f'v_mul_f32 v3, v{a}, v{a+1}')
            for m in ms[1:4]:
                e(f'v_fmac_f32 v3, v{m}, v{m+1}')
            e('v_rcp_f32 v3, v3'); e('s_nop 0')
            e('v_mul_f32 v2, v2, v3')
            for i in range(16):
                e(f'v_mul_f32 v{sc[i]}, v{sc[i]}, v2')
            for i in range(16):
                e(f'v_cvt_pk_bf16_f32 v{sc[i]}, v{sc[i]}, v{sc[i]}')
            e('s_nop 1')
            st['acc'] = st['T'][3]
            self.stamp(3)

        def pv_prep(i):
            k = i - 64
            A = st['T'][1 + (k & 1)]
            for j in range(4):
                e(f'v_and_b32_dpp v{A+j}, v{sc[k>>2]}, v{4+j} row_newbcast:{4*(k&3)} {DPPF}')

        def w_pv(i):
            k = i - 64
            A = st['T'][1 + (k & 1)]
            acc = st['acc']
            if i in inlds:
                fetch([t for t in range(i, i + 8) if t <= st['landed']])
            if k == 0:
                pv_prep(i)
            if i < 127:
                pv_prep(i + 1)
            V = slot[i]
            c = '0' if k == 0 else f'v[{acc}:{acc+3}]'
            st['pv_mfma'] = f'v_mfma_f32_16x16x32_bf16 v[{acc}:{acc+3}], v[{A}:{A+3}], v[{V}:{V+3}], {c}'
            e(st['pv_mfma'])
            free.append(V)

        work = [(-1, 0, w_q)]
        work += [(4 * G + 3, 30, (lambda G=G: w_qk(G))) for G in range(16)]
        work += [(-1, 60, w_sm1), (-1, 70, w_sm2), (-1, 60, w_sm3)]
        work += [(i, 6, (lambda i=i: w_pv(i))) for i in range(64, 128)]
        started = False
        JJ = self.JJ or self.QJ
        for j in range(128):
            landed = st.get('landed', -1)
            tolds = RG <= j < RG + self.NL
            st['landed'] = landed
            while not free and not tolds:
                started = True
                need, cost, fn = work.pop(0)
                assert need <= landed, (j, need)
                fn()
            D0 = self.D0 or D
            lo = D
            for j0, d0 in self.DS:
                if j >= j0:
                    lo = d0
            Dj = max(D2, lo) if (j < max(max(self.FU) + self.FX, max(self.FU2))) else lo
            if j >= self.JE:
                Dj = lo = self.DE
            assert Dj <= D2 or j >= RG + self.NL
            if self.HP and self.HE and j == 128 - self.HE:
                st['hp'] = [r for r in free if r >= 96][:3]
                assert len(st['hp']) == 3
                for r in st['hp']:
                    free.remove(r)
                l = self.lab('hp')
                e(f's_cmp_lt_u32 s2, {self.HP}'); e(f's_cbranch_scc0 {l}')
                self.help_look(st['hp'][0]); e(f'{l}:')
            if self.FA and j == self.FA and not self.TB:
                set_boost(self.FU2[:5], self.FU2[5], 0, 's71')
            if self.TB and j in self.TB:
                e('s_memrealtime s[60:61]'); e('s_waitcnt lgkmcnt(0)'); e('s_sub_u32 s60, s60, s100')
                e(f's_cmp_gt_u32 s60, {int(self.TB[j] * 100)}'); e('s_cselect_b32 s69, 255, 0')
            waits = []
            xj = [] if 'j' in self.abl or not self.XC else [JJ - D2 - 2, self.QJ]
            cnt = lambda d: d - 1 + sum(1 for x in xj if j - d < x <= j)
            if j >= D0:
                if Dj != lo:
                    waits.append(f's_cmpk_gt_u32 s69, {j}')
                if j >= Dj:
                    waits.append(f's_waitcnt vmcnt({cnt(Dj)})')
                if Dj != lo:
                    l = self.lab('d')
                    waits += [f's_cbranch_scc1 {l}', f's_waitcnt vmcnt({cnt(lo)})', f'{l}:']
            else:
                Dj = 999
            if j == JJ - D2 - 2 and 'j' not in self.abl:
                j_load('')
            if j == JJ and 'j' not in self.abl:
                j_check()
            if self.HP and j == self.HM[0]:
                e('s_and_b32 s62, s2, 7'); e('s_lshl_b32 s62, s62, 9'); e(f's_add_u32 s62, s62, {WS_PRG}')
                e('s_lshr_b32 s63, s2, 3'); e('s_lshl_b32 s63, s63, 2'); e('s_add_u32 s63, s63, s62')
            for on, M, hi, off in ((self.HP, self.HM, 128, 0),):
                if on and M[0] <= j < hi and (j - M[0]) % M[1] == 0:
                    if j == M[0]:
                        st['mk'] = free.pop(0)
                    self.if_w((j - M[0]) // M[1] % 4, lambda: (e(f'v_mov_b32 v{st["mk"]}, {j & 63}'), e('s_mov_b64 exec, 1'),
                                                             e(f'buffer_store_dword v{st["mk"]}, off, {WS}, s63 offset:{off}'), e('s_mov_b64 exec, -1')))
            if j == self.QJ and 'j' not in self.abl:
                assert j + D2 + 1 < RG + self.NL <= self.JE
                q_load()
            if j % 8 == 0 and j:
                self.stamp(j // 8, 3)
            if j == 0:
                self.stamp(11)
            if j == D:
                self.stamp(12)
            if j == 2 * D:
                self.stamp(13)
            srd = SA if j < 64 else SB
            so = 's65'
            if tolds:
                if j == RG:
                    e(f's_mul_i32 s70, s34, {1024*self.NL}'); e(f's_add_u32 s70, s70, {L_EXT}')
                inlds[j] = j - RG
                e(f's_add_u32 m0, s70, {(j-RG)*1024}')
            if koff(j & 63) or tolds:
                so = 's64'
                e(f's_xor_b32 s64, s65, {koff(j & 63)}')
            for x in waits:
                e(x)
            if tolds:
                e(f'buffer_load_dwordx4 v1, {srd}, {so} offen {self.kvflags} lds')
            else:
                r = free.pop(0)
                slot[j] = r
                e(f'buffer_load_dwordx4 v[{r}:{r+3}], v1, {srd}, {so} offen {self.kvflags}')
            if j == D0 - 1:
                e('s_barrier')
                if self.SN:
                    late_setup()
            if j == D0 - 1 + self.SN:
                e('s_branch L_srest')
                self.L = []
                e('; ---- stream waves, main part'); e('L_srest:')
                if not self.SN:
                    late_setup()
            landed = max(landed, j - Dj)
            st['landed'] = landed
            budget = self.budget
            while started and work and work[0][0] <= landed and budget > 0:
                need, cost, fn = work.pop(0)
                fn()
                budget -= cost
        def drain(extra):
            for need, cost, fn in work:
                e(f's_waitcnt vmcnt({127-need+extra})')
                st['landed'] = need
                if need == 127:
                    self.ts(1)
                    self.stamp(16, 3)
                fn()
        assert not inlds and all(w[0] > 64 for w in work)
        gr = None
        if self.GP >= 3:
            gr = [free.pop(), free.pop()]

        def gdrain(extra):
            if self.GP == 4:
                l = self.lab('ng')
                n = self.gp_s(gr, l)
                drain(extra + n)
                e('s_branch L_drained')
                e(f'{l}:')
            drain(extra)

        def ending(x, tag):
            if self.HP and self.HE:
                e(f's_cmp_lt_u32 s2, {self.HP}'); e(f's_cbranch_scc0 L_nohelp{tag}')
                self.help_prep(*st['hp'])
                e(f's_waitcnt vmcnt({self.HE + x})')
                self.help_go(*st['hp'], f'L_drain{tag}', 's8', 's9', self.HM, self.HL, self.HG, 0)
                gdrain(self.HN + 1 + x)
                e('s_branch L_drained')
                e(f'L_nohelp{tag}:')
            if self.NS:
                e('s_cmp_eq_u32 s74, -1'); e(f's_cbranch_scc1 L_drain{tag}')
                self.ffn_slab(self.NPRE, self.NPRE + self.NS, 16, st['T'][4])
                drain(x + (0 if 'f' in self.abl else self.NS))
                e('s_branch L_drained')
            e(f'L_drain{tag}:')
            gdrain(x)
        if self.GP == 3:
            n = self.gp_s(gr, 'L_nogp3')
            ending(n, 'g')
            e('s_branch L_drained')
            e('L_nogp3:')
        ending(0, '')
        e('L_drained:')
        acc = st['acc']
        e('v_and_b32 v2, 15, v0'); e('v_lshlrev_b32 v2, 5, v2'); e('v_and_b32 v3, 16, v0'); e('v_add_u32 v2, v2, v3')
        e('s_lshl_b32 s68, s34, 9'); e('v_add_u32 v2, s68, v2')
        e('s_mov_b32 exec_hi, 0')
        e('s_nop 1')
        e(f'ds_write_b128 v2, v[{acc}:{acc+3}] offset:{L_OP}')
        e('s_mov_b32 exec_hi, -1')
        if self.GT == 63 or self.GTF == 63:
            self.if_w(0, lambda: (e('v_mov_b32 v3, 63'), e('s_mov_b64 exec, 1'), e(f'buffer_store_dword v3, off, {WS}, s63'), e('s_mov_b64 exec, -1')))
        e('v_lshlrev_b32 v1, 4, v0')
        e('s_waitcnt lgkmcnt(0)')
        self.stamp(4)
        self.ts(2)
        e('s_barrier')
        if self.GP == 1:
            self.gp()
        e('v_mov_b32 v2, 0'); e(f'ds_read_b32 v3, v2 offset:{L_RT}'); e('s_waitcnt lgkmcnt(0)'); e('v_readfirstlane_b32 s35, v3')
        if self.HP and not self.HE:
            e(f's_cmp_lt_u32 s2, {self.HP}'); e('s_cbranch_scc1 L_help')
        e('s_branch L_fin' if 't' in self.abl else 's_branch L_tail_s')
        if self.HP and not self.HE:
            e('L_help:')
            self.help_look(8); self.help_prep(8, 12, 16); e('s_waitcnt vmcnt(0)'); self.help_go(8, 12, 16, 'L_fin', 's8', 's9', self.HM, self.HL, self.HG, 0)
        if 's' in self.abl:
            self.L = [x for x in self.L if not x.startswith(('v_dot', 'v_add_f32_dpp', 'v_and_b32_dpp', 'v_mfma', 'v_cvt_pk', 'v_exp', 'v_mul_f32', 'v_sub_f32', 's_nop') + (('v_', 'ds_') if 'S' in self.abl else ()))]
        self.s_rest = self.L
        self.L = head

    def help_look(self, A, off=0):
        e = self.e
        e(f'v_lshlrev_b32 v{A}, 2, v0')
        e(f'buffer_load_dword v{A+1}, v{A}, {WS}, s62 offen offset:{off} sc1')

    def help_prep(self, A, B, C):
        e = self.e
        assert tuple(self.cols) == (4, 8, 16, 32, 64, 128, 256, 512) and self.perm[:2] == (0, 1) and self.HN <= 2
        for k in range(self.HN):
            e(f'v_lshrrev_b32 v{C+k}, 3, v0'); e(f'v_sub_u32 v{C+k}, {63-8*k}, v{C+k}')
            e(f'v_and_b32 v{B+k}, 7, v0'); e(f'v_lshlrev_b32 v{B+k}, 7, v{B+k}')
            for b in range(6):
                e(f'v_bfe_u32 v{A+2}, v{C+k}, {b}, 1'); e(f'v_lshl_or_b32 v{B+k}, v{A+2}, {8+self.perm[4+b]}, v{B+k}')
        e('s_lshr_b32 s71, s2, 3')
        e(f'v_subrev_u32 v{A+3}, s71, v0'); e(f'v_and_b32 v{A+3}, 31, v{A+3}')

    def help_go(self, A, B, C, none, lo, hi, M, L, G, off):
        e = self.e
        m, c = A + 1, A + 2
        e(f'v_mov_b32 v{c}, v{m}'); e('s_nop 1'); e(f'v_permlane32_swap_b32 v{m}, v{c}')
        e(f'v_add_u32 v{m}, 1, v{m}'); e(f'v_max_u32 v{m}, {(M[0] & 63) - M[1] + 1}, v{m}')
        e(f'v_cmp_eq_u32 vcc, -1, v{c}'); e(f'v_mov_b32 v{A}, 0xff'); e('s_nop 0'); e(f'v_cndmask_b32 v{m}, v{A}, v{m}, vcc')
        e(f'v_lshl_or_b32 v{m}, v{m}, 5, v{A+3}'); e('s_nop 1')
        for dpp in ['quad_perm:[1,0,3,2]', 'quad_perm:[2,3,0,1]', 'row_ror:4', 'row_ror:8']:
            e(f'v_min_u32_dpp v{m}, v{m}, v{m} {dpp} {DPPF}'); e('s_nop 1')
        e(f'v_readlane_b32 s76, v{m}, 0'); e(f'v_readlane_b32 s66, v{m}, 16'); e('s_min_u32 s76, s76, s66')
        e('s_lshr_b32 s66, s76, 5'); e(f's_cmp_lt_u32 s66, {64 - L - G}'); e(f's_cbranch_scc0 {none}')
        self.srd(SC, lo, hi, 1 << 28)
        e('s_lshr_b32 s64, s2, 3'); e('s_add_u32 s76, s76, s64'); e('s_and_b32 s76, s76, 31')
        e('s_lshl_b32 s67, s76, 2'); e('s_add_u32 s67, s67, s62')
        e('s_lshl_b32 s76, s76, 3'); e('s_and_b32 s64, s2, 7'); e('s_or_b32 s76, s76, s64')
        e('s_mul_i32 s76, s76, 0x100400'); e(f's_lshl_b32 s64, s34, {8+self.perm[2]}'); e('s_or_b32 s64, s64, 0xC0000'); e('s_xor_b32 s76, s76, s64')
        e(f's_add_u32 s66, s66, {L - 1}')
        for k in range(self.HN - 1, -1, -1):
            e(f'v_xor_b32 v{B+k}, s76, v{B+k}')
            e(f'v_cmp_lt_u32 vcc, s66, v{C+k}'); e('s_or_b64 exec, vcc, 1')
            e(f'buffer_load_dword v{B+2+k}, v{B+k}, {SC}, 0 offen {self.hpflags}')
            e('s_mov_b64 exec, -1')
        e('s_mov_b64 exec, 1'); e(f'buffer_store_dword v1, off, {WS}, s67 offset:{off+128}'); e('s_mov_b64 exec, -1')

    def make_table(self):
        e = self.e
        l = self.lab('tab')
        e('v_cmp_eq_u32 vcc, 0, v25'); e(f's_cbranch_vccz {l}')
        self.poll(lambda: e(f'buffer_load_dword v25, v24, {SD}, 0 offen offset:128 sc1'), 's_waitcnt vmcnt(0)',
                  lambda: e('v_cmp_eq_u32 vcc, 0, v25'), sleep=self.flagsleep)
        e(f'{l}:')
        e('v_bfe_u32 v26, v25, 8, 3'); e('v_lshrrev_b32 v25, 16, v25'); e('s_nop 0')
        for dpp in ['quad_perm:[1,0,3,2]', 'quad_perm:[2,3,0,1]', 'row_ror:4', 'row_ror:8']:
            e(f'v_add_u32_dpp v26, v26, v26 {dpp} {DPPF}'); e('s_nop 1')
        e('v_readlane_b32 s66, v26, 0'); e('v_readlane_b32 s71, v26, 16'); e('s_add_u32 s66, s66, s71'); e('s_cmp_gt_u32 s66, 64'); e('s_cselect_b32 s66, 1, 0')
        if self.pol is not None:
            e(f's_mov_b32 s66, {self.pol}')
        e('v_cmp_ne_u32 vcc, s66, v25'); e('s_and_b32 s71, vcc_lo, 0xff'); e('s_bcnt0_i32_b32 s66, s71'); e('s_sub_u32 s66, s66, 24')
        e('v_mbcnt_lo_u32_b32 v24, s71, 0'); e('v_sub_u32 v25, v0, v24'); e('v_add_u32 v24, s66, v24'); e('v_cndmask_b32 v24, v25, v24, vcc')
        e('v_bfe_u32 v25, v24, 1, 2'); e('v_and_b32 v26, 1, v24'); e('v_lshl_or_b32 v25, v26, 2, v25')
        e('v_lshlrev_b32 v25, v2, v25'); e('s_nop 1')
        for dpp in ['quad_perm:[1,0,3,2]', 'quad_perm:[2,3,0,1]', 'row_shl:4']:
            e(f'v_or_b32_dpp v25, v25, v25 {dpp} {DPPF}'); e('s_nop 1')
        e('v_readfirstlane_b32 s35, v25')
        e('s_mov_b64 exec, 1'); e(f'ds_write_b32 v2, v25 offset:{L_RT}'); e('s_mov_b64 exec, -1')

    def gate(self, thr, r):
        e = self.e
        lw, ld = self.lab('gw'), self.lab('gd')
        e(f'v_mov_b32 v{r+2}, 0')
        e('s_cmp_eq_u32 s34, 0'); e(f's_cbranch_scc0 {lw}')
        e('s_and_b32 s71, s2, 7'); e('s_lshl_b32 s71, s71, 9'); e(f's_add_u32 s71, s71, {WS_PRG}')
        e(f'v_and_b32 v{r}, 31, v0'); e(f'v_lshlrev_b32 v{r}, 2, v{r}')
        lp, lx = self.lab('gp'), self.lab('gx')
        e('s_mov_b32 s75, 0')
        e(f'{lp}:')
        e(f'buffer_load_dword v{r+1}, v{r}, {WS}, s71 offen sc1')
        e('s_waitcnt vmcnt(0)')
        e(f'v_add_u32 v{r+1}, 1, v{r+1}'); e(f'v_cmp_gt_u32 vcc, {thr + 1}, v{r+1}')
        e(f's_cbranch_vccz {lx}')
        e(f's_sleep {self.GS}')
        e('s_add_u32 s75, s75, 1'); e(f's_cmp_lt_u32 s75, {self.GC}'); e(f's_cbranch_scc1 {lp}')
        e(f'{lx}:')
        e(f'v_mov_b32 v{r+1}, 1'); e(f'ds_write_b32 v{r+2}, v{r+1} offset:{L_GATE}')
        e(f's_branch {ld}')
        e(f'{lw}:')
        self.poll(lambda: e(f'ds_read_b32 v{r+1}, v{r+2} offset:{L_GATE}'), 's_waitcnt lgkmcnt(0)', lambda: e(f'v_cmp_eq_u32 vcc, 0, v{r+1}'), sleep=1)
        e(f'{ld}:')

    def gp(self):
        e = self.e
        r = 8
        e(f's_sub_u32 s67, s2, {self.G0}'); e('s_cmp_lt_u32 s67, 128'); e('s_cbranch_scc0 L_nogp')
        if self.GT:
            self.gate(self.GT, 28)
        e('s_and_b32 s66, s2, 7'); e('s_min_u32 s64, s66, 3'); e('s_mul_i32 s71, s66, 5'); e('s_add_u32 s64, s64, s71')
        e('s_cmp_lt_u32 s66, 3'); e('s_cselect_b32 s66, 5, 4')
        e(f'v_and_b32 v{r}, 7, v0'); e(f'v_min_u32 v{r}, s66, v{r}'); e(f'v_add_u32 v{r}, s64, v{r}')
        e('s_and_b32 s64, s67, 0xf8'); e('s_lshl_b32 s64, s64, 2'); e('s_lshl_b32 s66, s34, 3'); e('s_add_u32 s64, s64, s66')
        e(f'v_lshrrev_b32 v{r+1}, 3, v0'); e(f'v_add_u32 v{r+1}, s64, v{r+1}'); e(f'v_mul_u32_u24 v{r+1}, 2752, v{r+1}')
        e(f'v_lshl_add_u32 v{r}, v{r}, 6, v{r+1}')
        if self.LD and self.LDP == 1:
            self.gp_down(r + 4)
        e(f'global_load_dword v{r+2}, v{r}, s[16:17]'); e(f'global_load_dword v{r+3}, v{r}, s[18:19]')
        if self.GB:
            e(f's_mov_b32 s64, {256*2752}'); e('s_bitcmp1_b32 s67, 6'); e(f's_cselect_b32 s64, {(-256*2752) & 0xffffffff}, s64')
            e(f'v_add_u32 v{r}, s64, v{r}')
            e(f'global_load_dword v{r+2}, v{r}, s[16:17]'); e(f'global_load_dword v{r+3}, v{r}, s[18:19]')
        if self.LD and self.LDP == 2:
            self.gp_down(r + 4)
        self.fin()
        e('L_nogp:')

    def gp_ticket(self):
        e = self.e
        r = 8
        n = self.TKN
        e(f's_cmp_lt_u32 s2, {self.TKW}'); e('s_cbranch_scc0 L_nogp')
        e('s_and_b32 s66, s2, 7'); e('s_min_u32 s64, s66, 3'); e('s_mul_i32 s71, s66, 5'); e('s_add_u32 s64, s64, s71')
        e('s_cmp_lt_u32 s66, 3'); e('s_cselect_b32 s66, 5, 4')
        e(f'v_and_b32 v{r}, 7, v0'); e(f'v_min_u32 v{r}, s66, v{r}'); e(f'v_add_u32 v{r}, s64, v{r}')
        e(f'v_lshrrev_b32 v{r+1}, 3, v0')
        e('s_waitcnt vmcnt(1)')
        e('v_readfirstlane_b32 s67, v28')
        e(f's_sub_u32 s67, s67, {self.TK0 - 1}'); e(f's_cmp_lt_u32 s67, {n}'); e('s_cbranch_scc0 L_fin')
        e(f's_mul_i32 s71, s67, {512 // n}')
        e(f'v_add_u32 v{r+1}, s71, v{r+1}'); e(f'v_mul_u32_u24 v{r+1}, 2752, v{r+1}')
        e(f'v_lshl_add_u32 v{r}, v{r}, 6, v{r+1}')
        def down():
            k = 1536 // n
            e('s_add_u32 s66, s66, 1'); e('s_lshl_b32 s66, s66, 8'); e('s_sub_u32 s66, s66, 1')
            e(f's_mul_i32 s71, s67, {k}')
            e(f'v_min_u32 v{r+4}, {k-1}, v0'); e(f'v_add_u32 v{r+4}, s71, v{r+4}'); e(f'v_min_u32 v{r+4}, s66, v{r+4}')
            e('s_lshl_b32 s64, s64, 15'); e(f'v_lshl_add_u32 v{r+4}, v{r+4}, 7, s64')
            e(f'global_load_dword v{r+5}, v{r+4}, s[20:21]')
        if self.LD and self.LDP == 1:
            down()
        for k in range(512 // n // 8):
            if k:
                e(f'v_add_u32 v{r}, {8*2752}, v{r}')
            e(f'global_load_dword v{r+2}, v{r}, s[16:17]'); e(f'global_load_dword v{r+3}, v{r}, s[18:19]')
        if self.LD and self.LDP == 2:
            down()
        self.fin()
        e('L_nogp:')

    def gp_s(self, gr, skip):
        e = self.e
        r, d = gr
        e(f's_sub_u32 s67, s2, {self.G0}'); e('s_cmp_lt_u32 s67, 128'); e(f's_cbranch_scc0 {skip}')
        e('s_and_b32 s66, s2, 7'); e('s_min_u32 s64, s66, 3'); e('s_mul_i32 s71, s66, 5'); e('s_add_u32 s64, s64, s71')
        e('s_cmp_lt_u32 s66, 3'); e('s_cselect_b32 s66, 5, 4')
        e(f'v_and_b32 v{r}, 7, v0'); e(f'v_min_u32 v{r}, s66, v{r}'); e(f'v_add_u32 v{r}, s64, v{r}')
        e('s_and_b32 s64, s67, 0xf8'); e('s_lshl_b32 s64, s64, 2'); e('s_lshl_b32 s66, s34, 3'); e('s_add_u32 s64, s64, s66')
        e(f'v_lshrrev_b32 v{r+1}, 3, v0'); e(f'v_add_u32 v{r+1}, s64, v{r+1}'); e(f'v_mul_u32_u24 v{r+1}, 2752, v{r+1}')
        e(f'v_lshl_add_u32 v{r}, v{r}, 6, v{r+1}')
        n = 2
        if self.LD and self.LDP == 1:
            self.gp_down(r + 2, d + 2); n = 3
        e(f'global_load_dword v{d}, v{r}, s[16:17]'); e(f'global_load_dword v{d+1}, v{r}, s[18:19]')
        if self.LD and self.LDP == 2:
            self.gp_down(r + 2, d + 2); n = 3
        return n

    def gp_down(self, r, d=None):
        e = self.e
        e('s_and_b32 s66, s2, 7'); e('s_min_u32 s70, s66, 3'); e('s_mul_i32 s71, s66, 5'); e('s_add_u32 s70, s70, s71')
        e('s_cmp_lt_u32 s66, 3'); e('s_cselect_b32 s66, 6, 5'); e('s_lshl_b32 s66, s66, 8'); e('s_sub_u32 s66, s66, 1')
        e('s_lshr_b32 s71, s67, 3'); e('s_lshl_b32 s71, s71, 2'); e('s_add_u32 s71, s71, s34'); e('s_mul_i32 s71, s71, 24')
        e(f'v_min_u32 v{r}, 23, v0'); e(f'v_add_u32 v{r}, s71, v{r}'); e(f'v_min_u32 v{r}, s66, v{r}')
        e('s_lshl_b32 s70, s70, 15'); e(f'v_lshl_add_u32 v{r}, v{r}, 7, s70')
        e(f'global_load_dword v{r+1 if d is None else d}, v{r}, s[20:21]')

    def common(self):
        e = self.e
        if self.diag:
            e('s_mov_b32 s80, s100')
        e('s_lshr_b32 s32, s2, 5'); e('s_and_b32 s33, s2, 31')
        e('s_and_b32 s67, s2, 7'); e('s_lshr_b32 s68, s2, 3'); e('s_sub_u32 s68, s68, 26')
        e('s_min_u32 s74, s67, 3'); e('s_mul_i32 s66, s67, 5'); e('s_add_u32 s74, s74, s66'); e('s_add_u32 s74, s74, s68')
        e('s_cmp_lt_u32 s67, 3'); e('s_cselect_b32 s66, 6, 5'); e('s_cmp_lt_u32 s68, s66'); e('s_cselect_b32 s74, s74, -1')
        e('s_cmp_lt_u32 s2, 48'); e('s_cselect_b32 s66, 2, 3'); e('s_cselect_b32 s72, 14+26, 42+26')
        e('s_cmp_lt_u32 s2, 16'); e('s_cselect_b32 s66, 1, s66'); e('s_cselect_b32 s72, 26, s72')
        e('s_lshl_b32 s66, s67, s66'); e('s_add_u32 s72, s72, s66'); e('s_add_u32 s72, s72, s68')
        self.srd(WS, 's30', 's31', WS_STAMP + 0x40000 if self.diag else WS_END)
        self.srd(SD, 's28', 's29', 256)

    def phase0_addr(self):
        e = self.e
        e('s_and_b32 s67, s2, 7'); e('s_lshr_b32 s68, s2, 3')
        e('v_and_b32 v38, 7, v0'); e('v_lshrrev_b32 v37, 3, v0')
        e('s_cmp_eq_u32 s34, 0'); e('s_cbranch_scc0 L_p0a')
        e('s_mov_b32 s70, 6'); e('s_lshl_b32 s67, s67, 1'); e('s_add_u32 s66, s67, 14')
        e('v_min_u32 v38, %d, v38' % (1 if 'l' in self.abl else 5)); e('v_cmp_lt_u32 vcc, 1, v38'); e('v_add_u32 v36, s66, v38'); e('s_nop 0'); e('v_cndmask_b32 v38, v38, v36, vcc')
        e('s_branch L_p0b')
        e('L_p0a:')
        e('s_lshl_b32 s67, s67, 3'); e('s_lshl_b32 s65, s2, 3'); e('s_and_b32 s65, s65, 0xff'); e('s_lshr_b32 s66, s2, 5'); e('s_or_b32 s65, s65, s66')
        e('s_cmp_eq_u32 s34, 2'); e('s_cselect_b32 s70, 1, 8'); e('s_cselect_b32 s68, s65, s68'); e('s_cselect_b32 s67, 0, s67')
        e('L_p0b:')
        e('v_lshl_add_u32 v37, s68, 4, v37'); e('v_mul_u32_u24 v37, s70, v37')
        e('v_lshl_add_u32 v38, v37, 3, v38'); e('v_add_lshl_u32 v38, v38, s67, 7')
        e('s_lshl_b32 s70, s70, 13'); e('v_add_u32 v39, s70, v38')

    def phase0_issue(self):
        e = self.e
        l = self.lab('p0')
        e('s_cmp_eq_u32 s34, 3'); e(f's_cbranch_scc1 {l}')
        e('s_cmp_eq_u32 s34, 0'); e('s_cselect_b32 s62, s24, s10'); e('s_cselect_b32 s63, s25, s11')
        e('s_cmp_eq_u32 s34, 2'); e('s_cselect_b32 s62, s12, s62'); e('s_cselect_b32 s63, s13, s63')
        e('global_load_dword v12, v38, s[62:63]'); e('global_load_dword v13, v39, s[62:63]')
        e(f'{l}:')

    def phase0_ffn(self):
        e = self.e
        x, y = 's67', 's68'
        e(f's_and_b32 {x}, s2, 7'); e(f's_lshr_b32 {y}, s2, 3')
        e(f's_min_u32 s64, {x}, 3'); e(f's_mul_i32 s65, {x}, 5'); e('s_add_u32 s64, s64, s65')
        e(f's_cmp_lt_u32 {x}, 3'); e('s_cselect_b32 s65, 6, 5')
        if 'd' in self.P3 and not self.LD:
            e(f's_mul_i32 s66, {y}, s65'); e('s_lshl_b32 s66, s66, 10'); e('s_lshl_b32 s69, s64, 15'); e('s_add_u32 s66, s66, s69')
            e('s_lshl_b32 s69, s65, 3'); e('s_sub_u32 s69, s69, 1'); e('v_min_u32 v16, s69, v0'); e('v_lshl_add_u32 v16, v16, 7, s66')
            e('global_load_dword v33, v16, s[20:21]')
        if 'f' in self.P3:
            n = int(self.P3[-1])
            e('s_sub_u32 s65, s65, 1'); e('v_and_b32 v16, 7, v0'); e('v_min_u32 v16, s65, v16'); e('v_add_u32 v16, s64, v16')
            e('v_lshrrev_b32 v17, 3, v0'); e(f'v_min_u32 v17, {n-1}, v17')
            e(f's_and_b32 s66, {y}, 7'); e(f's_mul_i32 s66, s66, {n}'); e(f's_lshr_b32 s69, {y}, 3'); e('s_lshl_b32 s69, s69, 7'); e('s_add_u32 s66, s66, s69')
            e('v_add_u32 v17, s66, v17'); e('v_mul_u32_u24 v17, 2752, v17'); e('v_lshl_add_u32 v16, v16, 6, v17')
            e('global_load_dword v34, v16, s[16:17]'); e('global_load_dword v35, v16, s[18:19]')

    def pclear(self):
        e = self.e
        assert WS_MOD == 0
        e('v_mov_b32 v4, -1'); e('v_mov_b32 v5, -1'); e('v_mov_b32 v6, -1'); e('v_mov_b32 v7, -1')
        e('s_and_b32 s66, s2, 7'); e('s_lshl_b32 s66, s66, 11'); e('s_and_b32 s65, s2, 8'); e('s_lshl_b32 s65, s65, 7'); e('s_add_u32 s66, s66, s65')
        e('v_add_u32 v8, s66, v1')
        e('global_store_dwordx4 v8, v[4:7], s[30:31] sc1')
        e('s_lshl_b32 s66, s2, 2'); e('v_mov_b32 v3, s66')
        e('s_waitcnt vmcnt(0)')
        e('s_mov_b64 exec, 1')
        if 'Y' not in self.abl:
            e('global_store_dword v3, v4, s[28:29] sc1')
        e('s_mov_b64 exec, -1')
        self.stamp(10)

    def janitor(self):
        e = self.e
        e('v_mov_b32 v4, -1'); e('v_mov_b32 v5, -1'); e('v_mov_b32 v6, -1'); e('v_mov_b32 v7, -1')
        e('s_lshl_b32 s67, s64, 2'); e('s_add_u32 s67, s67, s34'); e('s_cmp_lt_u32 s67, 32'); e(f's_cselect_b32 s66, 0, {GAP}')
        e('s_mul_i32 s65, s67, 3072'); e('s_add_u32 s65, s65, s66'); e(f's_add_u32 s65, s65, {WS_BLK}')
        e('v_add_u32 v8, s65, v1')
        if 'c' not in self.abl:
            for k in range(3):
                e(f'global_store_dwordx4 v8, v[4:7], s[30:31] offset:{k*1024} {self.cflags}')
        e('s_and_b32 s66, s67, 64'); e('s_add_u32 s67, s67, s66'); e('s_lshl_b32 s67, s67, 7'); e(f's_add_u32 s67, s67, {WS_RACE}')
        e('v_and_b32 v8, 8, v0'); e('v_lshlrev_b32 v8, 10, v8'); e('v_and_b32 v10, 0x70, v1'); e('v_add3_u32 v8, v8, v10, s67')
        e('s_mov_b64 exec, 0xffff')
        e(f'global_store_dwordx4 v8, v[4:7], s[30:31] {self.cflags}')
        e('s_mov_b64 exec, 1')
        e(f's_load_dword s68, s[30:31], {WS_RACE - 0x100000:#x}')
        e('s_and_b32 s65, s34, 1'); e('s_lshl_b32 s66, s65, 13'); e('s_xor_b32 s67, s67, s66'); e('s_xor_b32 s66, s67, 0x2000')
        e('s_waitcnt vmcnt(0) lgkmcnt(0)')
        if self.P0:
            e('s_mov_b64 exec, -1'); self.phase0_issue(); e('s_mov_b64 exec, 1')
        for a, n in (('s67', 's70'), ('s66', 's71')):
            l = self.lab('race')
            e(f's_mov_b32 {n}, 0')
            e(f's_load_dword s68, s[30:31], {a}')
            e(f'{l}:')
            e('s_getreg_b32 s69, hwreg(HW_REG_IB_STS, 8, 4)'); e(f's_add_u32 {n}, {n}, 1'); e('s_cmp_eq_u32 s69, 0'); e(f's_cbranch_scc0 {l}')
            e('s_waitcnt lgkmcnt(0)')
        if self.diag == 1:
            e('s_add_u32 s91, s70, s100'); e('s_add_u32 s92, s71, s100')
        e('s_cmp_lt_u32 s71, s70'); e('s_cselect_b32 s70, 1, 0'); e('s_xor_b32 s70, s70, s65')
        e('s_getreg_b32 s69, hwreg(HW_REG_XCC_ID, 2, 1)'); e('s_xor_b32 s70, s70, s69'); e('s_lshl_b32 s69, s69, 14')
        e('s_lshl_b32 s70, s70, 8'); e('s_add_u32 s70, s70, s69'); e('s_add_u32 s70, s70, 1'); e('v_mov_b32 v9, s70')
        e('s_lshl_b32 s65, s64, 2'); e('v_mov_b32 v8, s65')
        e(f'ds_add_rtn_u32 v11, v2, v9 offset:{L_CNT}')
        e('s_waitcnt lgkmcnt(0)')
        e('v_add_u32 v11, v11, v9'); e('v_and_b32 v10, 0xff, v11'); e('v_cmp_eq_u32 vcc, 4, v10')
        l = self.lab('j')
        e(f's_cbranch_vccz {l}')
        if 'y' not in self.abl:
            e('global_store_dword v8, v11, s[28:29] offset:128 sc1')
        e(f'{l}:')
        e('s_mov_b64 exec, -1')
        self.stamp(10)

    def if_w(self, w, fn, other=None):
        e = self.e
        l = self.lab('w')
        e(f's_cmp_eq_u32 s34, {w}'); e(f's_cbranch_scc0 {l}')
        fn()
        if other:
            l2 = self.lab('w')
            e(f's_branch {l2}'); e(f'{l}:'); other(); e(f'{l2}:')
        else:
            e(f'{l}:')

    def h_wave(self):
        e = self.e
        e('; ---- helper waves: prefetch addresses, LDS init'); e('L_helper:')
        if 'H' in self.abl:
            e('s_endpgm')
        e(f's_setprio {self.hprio}')
        e('v_lshlrev_b32 v2, 2, v0')
        e('s_cmp_eq_u32 s3, 7'); e('s_cbranch_scc0 L_nopf')
        if self.prefetch:
            e('s_getpc_b64 s[60:61]')
            e('L_pc:')
            e('s_lshr_b32 s66, s2, 3'); e('s_lshl_b32 s66, s66, 10')
            e('v_add_u32 v10, s66, v1')
            e('v_min_u32 v10, L_code_end-L_pc-16, v10')
            e('global_load_dwordx4 v[12:15], v10, s[60:61]')
        e('v_sub_u32 v3, v0, 16'.replace('v_sub_u32 v3, v0, 16', 'v_subrev_u32 v3, 16, v0')); e('v_ashrrev_i32 v3, 31, v3')
        e(f'ds_write_b32 v2, v3 offset:{L_ML}')
        e('L_nopf:')
        if self.P0:
            self.phase0_addr()
        e('s_sub_u32 s64, s2, 112'); e(f's_cmp_lt_u32 s64, {self.JC}')
        e('s_waitcnt lgkmcnt(0)')
        e('s_barrier')
        if 'J' not in self.abl:
            e('s_cbranch_scc1 L_jan')
        if self.P0:
            self.phase0_issue()
        e('L_nop0:')
        e('s_cmp_eq_u32 s34, 3'); e('s_cselect_b32 s64, 16, 0'); e('s_cmp_lt_u32 s2, s64'); e('s_cbranch_scc0 L_nopc')
        self.pclear()
        e('L_nopc:')
        self.if_w(3, lambda: self.phase0_ffn() if self.P3 else None)
        self.stamp(11)
        self.common()
        e('v_mov_b32 v9, 1')
        if 'q' in self.abl:
            e('s_branch L_norole')
        e('s_cmp_lt_u32 s2, 112'); e('s_cbranch_scc0 L_norole')
        self.gemm_role()
        e('s_branch L_waitq')
        e('L_jan:')
        self.janitor()
        e('s_branch L_nop0')
        e('L_norole:')
        e('s_cmp_eq_u32 s74, -1'); e('s_cbranch_scc1 L_waitq')
        self.ffn_slab(0, self.NPRE)
        e('; ---- w_down and wo -> LDS -> transposed MFMA operands'); e('L_waitq:')
        self.stamp(1)

        self.stamp(2)
        self.wo_load()
        if 't' not in self.abl:
            self.make_table()
        if 't' not in self.abl:
            self.red_preload()
        self.stamp(3)

        e('v_lshlrev_b32 v10, 3, v0')
        e('s_lshl_b32 s64, s34, 8'); e(f's_add_u32 s64, s64, {L_OB}')
        e('s_lshr_b32 s66, s68, 1'); e('v_xor_b32 v12, s66, v0'); e('v_mov_b32 v14, 0')
        for i, pbit in enumerate(self.wperm):
            e(f'v_bfe_u32 v11, v12, {pbit-1}, 1'); e(f'v_lshl_or_b32 v14, v11, {i}, v14')
        e('v_and_b32 v11, 0x38, v14'); e('v_and_b32 v12, 1, v14'); e('v_lshl_add_u32 v11, v12, 2, v11')
        e('v_bfe_u32 v12, v14, 1, 2'); e('v_add_u32 v11, v11, v12'); e('v_lshl_add_u32 v11, v11, 2, s64')
        e('v_and_b32 v14, 1, v0'); e('v_and_b32 v12, 48, v0'); e('v_lshlrev_b32 v12, 1, v12'); e('v_lshl_add_u32 v12, v14, 4, v12')
        e('v_add_u32 v12, s64, v12')
        e('v_mul_u32_u24 v15, 0xaaaa, v14'); e('v_add_u32 v15, 0x4444, v15')
        for i in range(64, 96):
            e(f'v_mov_b32 v{i}, 0')
        e('s_lshl_b32 s64, s34, 3'); e('s_lshr_b32 s64, s35, s64')
        e('v_bfe_u32 v13, v0, 3, 1'); e('v_lshlrev_b32 v13, 2, v13'); e('v_bfe_u32 v13, s64, v13, 3')
        e('v_and_b32 v14, 0x70, v1'); e('v_lshl_add_u32 v13, v13, 12, v14')
        if self.SK:
            e('s_lshl_b32 s64, s34, 2'); e('s_add_u32 s64, s64, s33'); e('v_bfe_u32 v14, v0, 3, 1'); e('v_lshl_add_u32 v14, v14, 1, s64')
            e('v_and_b32 v14, 31, v14'); e('v_lshl_add_u32 v13, v14, 7, v13')
            e('s_lshl_b32 s69, s32, 15'); e(f's_add_u32 s69, s69, {WS_P1}')
        else:
            e('s_lshl_b32 s69, s32, 15')
            e('s_lshl_b32 s64, s33, 7'); e('s_add_u32 s69, s69, s64'); e(f's_add_u32 s69, s69, {WS_P1}')
        e('s_waitcnt vmcnt(0) lgkmcnt(0)')
        self.stamp(4)
        e('s_barrier')

    def ffn_slab(self, a, b, FD=None, v=16):
        e = self.e
        if a == b:
            return
        FD = FD or self.FD
        self.srd(SA, 's16', 's17', 512 * 2752)
        self.srd(SE, 's18', 's19', 512 * 2752)
        e(f'v_lshrrev_b32 v{v}, 2, v0'); e(f'v_mul_u32_u24 v{v}, 2752, v{v}')
        e(f'v_and_b32 v{v+1}, 3, v0'); e(f'v_lshrrev_b32 v{v+2}, 5, v0'); e(f'v_xor_b32 v{v+1}, v{v+1}, v{v+2}')
        e(f'v_xor_b32 v{v+2}, 2, v{v+1}')
        e(f'v_lshl_add_u32 v{v+1}, v{v+1}, 4, v{v}'); e(f'v_lshl_add_u32 v{v+2}, v{v+2}, 4, v{v}')
        e(f's_mul_i32 s64, s34, {128*2752}'); e('s_lshl_b32 s65, s74, 6'); e('s_add_u32 s64, s64, s65')
        e('s_lshl_b32 s65, s34, 13')
        if 'F' in self.abl:
            e('v_mov_b32 v17, v1'); e('v_mov_b32 v18, v1'); e('s_lshl_b32 s64, s74, 15'); e('s_add_u32 s64, s64, s65')
        for i in range(a, b):
            if 'f' in self.abl:
                continue
            t, m = i >> 1, i & 1
            if i - a >= FD:
                e(f's_waitcnt vmcnt({FD-1})')
            e(f's_add_u32 m0, s65, {L_BIG + m*32768 + t*1024}')
            e(f's_add_u32 s66, s64, {t*1024 if "F" in self.abl else t*16*2752}')
            e(f'buffer_load_dwordx4 v{v+1+m}, {SE if m else SA}, s66 offen {self.fflags} lds')

    def colmap(self):
        e = self.e
        e('v_and_b32 v5, 15, v0'); e('v_and_b32 v6, 16, v0'); e('v_lshl_add_u32 v5, v6, 1, v5')
        e('v_and_b32 v6, 32, v0'); e('v_lshrrev_b32 v6, 1, v6'); e('v_add_u32 v5, v5, v6')
        e('v_lshlrev_b32 v5, 1, v5'); e('v_and_b32 v6, 0x7c, v5')

    def red_preload(self):
        e = self.e
        l = self.lab('rp')
        e('s_sub_u32 s64, s2, 144'); e('s_cmp_lt_u32 s64, 64'); e(f's_cbranch_scc0 {l}')
        e('s_cmp_eq_u32 s34, 0'); e(f's_cbranch_scc0 {l}')
        self.srd(SC, 's4', 's5', 8192)
        self.colmap()
        e('s_lshl_b32 s65, s64, 7'); e('s_and_b32 s66, s65, 0x380')
        e('s_lshr_b32 s64, s64, 3'); e(f's_mul_i32 s64, s64, {BP}'); e('s_add_u32 s64, s64, s66'); e(f's_add_u32 s64, s64, {WS_BLK + 8192}')
        e(f'buffer_load_ushort v18, v5, {SC}, s65 offen')

        def gissue():
            for i, off in enumerate((0, 3072)):
                e(f'buffer_load_dword v{19+i}, v6, {WS}, s64 offen offset:{off} sc1')
        self.poll(gissue, 's_waitcnt vmcnt(0)', lambda: self.sent_check([19, 20], 16), sleep=self.flagsleep)
        e('v_and_b32 v16, 1, v0'); e('v_lshlrev_b32 v16, 4, v16'); e('v_xor_b32 v16, 16, v16')
        e('v_lshlrev_b32 v18, 16, v18')
        for i in (19, 20):
            e(f'v_lshlrev_b32 v{i}, v16, v{i}'); e(f'v_and_b32 v{i}, 0xffff0000, v{i}')
        for k in range(3):
            e(f'ds_write_b32 v2, v{18+k} offset:{L_BIG + 256*k}')
        e(f'{l}:')

    def wo_load(self):
        e = self.e
        HD0, HD = self.HD, max(self.HD, self.HDF)
        e('s_cmp_eq_u32 s74, -1'); e('s_cselect_b64 vcc, 0, -1'); e('s_cmp_lt_u32 s2, 112'); e('s_cselect_b64 vcc, -1, vcc')
        self.srd(SB, 's12', 's13', 4096 * 1024)
        e('v_lshrrev_b32 v18, 4, v0'); e('v_and_b32 v16, 15, v0'); e('v_xor_b32 v16, v16, v18'); e('v_xor_b32 v17, 4, v16')
        e('v_lshlrev_b32 v19, 10, v18'); e('v_lshl_add_u32 v22, v16, 4, v19'); e('v_lshl_add_u32 v23, v17, 4, v19')
        wp = self.wperm
        e('v_and_b32 v19, 1, v18'); e('v_lshlrev_b32 v19, 10, v19'); e('v_lshrrev_b32 v18, 1, v18'); e(f'v_lshl_add_u32 v18, v18, {10+wp[0]}, v19')
        e('v_lshl_add_u32 v16, v16, 4, v18'); e('v_lshl_add_u32 v17, v17, 4, v18')
        e('v_lshrrev_b32 v18, 4, v0')
        e('v_bfe_u32 v19, v0, 2, 2')
        e('v_and_b32 v20, 2, v0'); e('v_lshlrev_b32 v20, 2, v20')
        e('v_xor_b32 v20, v20, v19')
        e('v_and_b32 v21, 1, v18'); e('v_lshlrev_b32 v21, 2, v21'); e('v_xor_b32 v20, v20, v21')
        e('v_lshlrev_b32 v20, 4, v20')
        e('v_lshl_add_u32 v20, v18, 10, v20'); e('v_lshl_add_u32 v20, v19, 8, v20')
        e('v_and_b32 v21, 1, v0'); e('v_lshl_add_u32 v20, v21, 3, v20')
        e('s_lshl_b32 s65, s34, 13'); e(f's_add_u32 s65, s65, {L_BIG + 4096}')
        assert self.NPRE + self.NS <= 8
        e('v_add_u32 v40, s65, v20')
        for T in range(1, 8):
            e(f'v_xor_b32 v{40+T}, {16*T}, v40')

        def stage(srd, sbase, nk, dst, va, wp, HD0, HD):
            n = 8 * nk

            def tr(hh):
                j, t = hh >> 1, hh & 1
                for T in range(8):
                    d = dst + (((j >> 1) * 8 + T) * 8 + (j & 1) * 4 if nk > 1 else T * 4) + 2 * t
                    e(f'ds_read_b64_tr_b16 v[{d}:{d+1}], v{40+T} offset:{t*32768}')
            done = 0
            for q in range(n):
                j, t, g = q >> 3, (q >> 2) & 1, q & 3
                if HD0 < HD and q >= HD0:
                    l = self.lab('hd')
                    e(f's_cbranch_vccnz {l}'); e(f's_waitcnt vmcnt({HD0-1})'); e(f'{l}:')
                if q >= HD:
                    e(f's_waitcnt vmcnt({HD-1})')
                while 4 * done + 3 <= q - HD:
                    tr(done); done += 1
                if q >= 8 and g == 0:
                    assert done >= (q >> 2) - 1
                    e('s_waitcnt lgkmcnt(0)')
                if nk > 1 and q == 26 and 't' not in self.abl:
                    e(f'v_and_b32 v24, {4*self.JC-1}, v2'); e(f'buffer_load_dword v25, v24, {SD}, 0 offen offset:128')
                e(f's_add_u32 m0, s65, {t*32768+g*1024}')
                row = (t << wp[1]) | ((g & 1) << wp[2]) | ((g >> 1) << wp[3]) | ((j & 1) << wp[4]) | ((j >> 1) << wp[5])
                e(f's_xor_b32 s66, {sbase}, {row*1024}')
                if 'w' not in self.abl and not ('W' in self.abl and nk > 1 and q >= 4) and not ('d' in self.abl and nk == 1): e(f'buffer_load_dwordx4 v{va+(g&1)}, {srd}, s66 offen {self.wflags} lds')
            e('s_waitcnt vmcnt(0)')
            while done < 2 * nk:
                tr(done); done += 1
            e('s_waitcnt lgkmcnt(0)')
        def down():
            lx = self.lab('nf')
            e('s_cmp_eq_u32 s74, -1'); e(f's_cbranch_scc1 {lx}')
            self.srd(SC, 's20', 's21', 1376 * 1024)
            e('s_lshl_b32 s64, s74, 15'); e('s_lshl_b32 s66, s34, 8'); e('s_add_u32 s64, s64, s66')
            stage(SC, 's64', 1, 96, 22, (1, 2, 3, 4, 5, 6), self.DD, self.DD)
            e(f'{lx}:')
        if self.downfirst and not self.LD:
            down()
        e('s_lshl_b32 s64, s33, 17'); e('s_lshl_b32 s66, s34, 8'); e('s_add_u32 s64, s64, s66')
        keep = 0x7e & ~(1 << wp[0])
        e('s_mov_b32 s68, 0')
        for reg, cs in (('s34', self.wcw), ('s2', self.wcols)):
            for b, c in enumerate(cs):
                if c & keep:
                    e(f's_bitcmp1_b32 {reg}, {b}'); e(f's_cselect_b32 s66, {c & keep}, 0'); e('s_xor_b32 s68, s68, s66')
        e('s_lshl_b32 s66, s68, 10'); e('s_add_u32 s64, s64, s66')
        stage(SB, 's64', 4, 128, 16, wp, HD0, HD)
        if not self.downfirst and not self.LD:
            down()

    def gemm_role(self):
        e = self.e
        A0, ACC, X = 128, 64, 192
        e('; ---- P / Q role: [8 x 512] @ [512 x 64]'); e('L_gemm:')
        e('v_and_b32 v16, 7, v0'); e('v_lshlrev_b32 v16, 10, v16')
        e('v_and_b32 v17, 8, v0'); e('v_lshl_add_u32 v16, v17, 3, v16')
        e('v_and_b32 v17, 48, v0'); e('v_add_u32 v16, v16, v17')
        e('s_lshl_b32 s67, s34, 8')
        e('v_lshrrev_b32 v19, 3, v0'); e('v_and_b32 v17, 2, v19'); e('v_and_b32 v18, 7, v0'); e('v_xor_b32 v17, v17, v18')
        e('v_xor_b32 v18, 4, v17'); e('v_lshlrev_b32 v17, 4, v17'); e('v_lshlrev_b32 v18, 4, v18')
        e('s_cmp_lt_u32 s2, 48'); e('s_cbranch_scc0 L_gq0')
        self.srd(SA, 's24', 's25', 512 * 6144)
        self.srd(SC, 's22', 's23', 8192)
        e('s_mov_b32 s70, 6144'); e('s_lshl_b32 s64, s72, 7')
        e('s_branch L_g1')
        e('L_gq0:')
        self.srd(SA, 's10', 's11', 512 * 8192)
        self.srd(SC, 's4', 's5', 8192)
        e('s_mov_b32 s70, 8192'); e('s_sub_u32 s64, s72, 48'); e('s_lshl_b32 s64, s64, 7')
        e('L_g1:')
        if 'G' in self.abl:
            e('s_mov_b32 s70, 128'); e('s_lshl_b32 s64, s64, 9')
        for u in range(2):
            e(f'buffer_load_dwordx4 v[{X+4*u}:{X+4*u+3}], v16, {SC}, s67 offen offset:{128*u}')
        e('v_mul_lo_u32 v19, s70, v19'); e('v_add_u32 v17, v17, v19'); e('v_add_u32 v18, v18, v19')
        e('s_lshl_b32 s66, s70, 7'); e('s_mul_i32 s66, s66, s34'); e('s_add_u32 s64, s64, s66')
        e('s_lshl_b32 s70, s70, 3')
        e('s_lshl_b32 s65, s34, 13'); e(f's_add_u32 s65, s65, {L_BIG}')
        e('s_cmp_lt_u32 s2, 16'); e(f's_cselect_b32 s71, 0, 2'); e('s_cmp_ge_u32 s2, 48'); e('s_cselect_b32 s71, 1, s71')
        for t in range(16):
            if t >= min(self.QD, self.PD):
                l = self.lab('pace')
                if t >= self.QD:
                    e('s_cmp_eq_u32 s71, 0'); e(f's_cbranch_scc1 {l}'); e(f's_waitcnt vmcnt({self.QD-1})')
                e('s_cmp_eq_u32 s71, 2'); e(f's_cbranch_scc0 {l}'); e(f's_waitcnt vmcnt({self.PD-1})')
                e(f'{l}:')
            e(f's_add_u32 m0, s65, {(t&7)*1024 + (t>>3)*32768}')
            e('s_nop 0')
            if 'l' in self.abl:
                ll = self.lab('abl'); e('s_sub_u32 s68, s2, 16'); e('s_cmp_lt_u32 s68, 32'); e(f's_cbranch_scc1 {ll}')
            if 'g' not in self.abl: e(f'buffer_load_dwordx4 v{17+(t&1)}, {SA}, s64 offen {self.gflags} lds')
            if 'l' in self.abl:
                e(f'{ll}:')
            e('s_add_u32 s64, s64, s70')
        self.stamp(12)
        e('s_waitcnt vmcnt(16)')
        self.stamp(13)
        e('s_cmp_eq_u32 s34, %d' % (9 if 'b' in self.abl else 0)); e('s_cselect_b32 s73, 48, 0x1000')
        e('v_and_b32 v30, 15, v0'); e('v_lshlrev_b32 v30, 2, v30')
        l = self.lab('fl')
        e('s_cmp_ge_u32 s2, s73'); e(f's_cbranch_scc0 {l}')
        e(f'buffer_load_dword v31, v30, {SD}, 0 offen sc1')
        e(f'{l}:')
        B = 48
        e('s_mov_b32 s68, 0xffff0000')
        e('s_cmp_lt_u32 s2, 48'); e('s_cbranch_scc0 L_gq1')
        e('s_mov_b32 s66, 0xbfb8aa3b')
        for i in range(8):
            e(f'v_lshlrev_b32 v20, 16, v{X+i}'); e(f'v_and_b32 v21, s68, v{X+i}')
            e('v_mul_f32 v22, s66, v20'); e('v_mul_f32 v23, s66, v21')
            e('v_exp_f32 v22, v22'); e('v_exp_f32 v23, v23'); e('s_nop 0')
            e('v_add_f32 v22, 1.0, v22'); e('v_add_f32 v23, 1.0, v23')
            e('v_rcp_f32 v22, v22'); e('v_rcp_f32 v23, v23'); e('s_nop 0')
            e('v_mul_f32 v20, v20, v22'); e('v_mul_f32 v21, v21, v23')
            e(f'v_cvt_pk_bf16_f32 v{B+i}, v20, v21')
        e('s_branch L_g2')
        e('L_gq1:')
        LN = 96
        e('v_and_b32 v32, 7, v0'); e('v_lshlrev_b32 v32, 2, v32')
        for i in range(8):
            e(f'v_lshlrev_b32 v{LN+2*i}, 16, v{X+i}'); e(f'v_and_b32 v{LN+2*i+1}, s68, v{X+i}')
        e(f'v_add_f32 v20, v{LN}, v{LN+1}')
        for i in range(2, 16):
            e(f'v_add_f32 v20, v20, v{LN+i}')
        e('s_nop 1')
        e(f'v_add_f32_dpp v20, v20, v20 row_ror:8 {DPPF}')
        self.allreduce_rows('v_add_f32', 20, 22)
        e('v_mul_f32 v20, 0x3c000000, v20')
        e('v_mov_b32 v21, 0')
        for i in range(16):
            e(f'v_sub_f32 v22, v{LN+i}, v20'); e('v_fmac_f32 v21, v22, v22')
        e('s_nop 1')
        e(f'v_add_f32_dpp v21, v21, v21 row_ror:8 {DPPF}')
        self.allreduce_rows('v_add_f32', 21, 22)
        e('v_lshlrev_b32 v22, 1, v32'); e('s_lshl_b32 s66, s34, 6'); e('v_add_u32 v23, s66, v22')
        e(f'ds_write_b64 v23, v[20:21] offset:{L_ST}')
        e('v_mov_b32 v23, 0')
        e('s_waitcnt lgkmcnt(0)')
        e('s_mov_b64 exec, 1')
        e(f'ds_add_u32 v23, v9 offset:{L_CNT2}')
        e('s_mov_b64 exec, -1')
        self.poll(lambda: e(f'ds_read_b32 v24, v23 offset:{L_CNT2}'), 's_waitcnt lgkmcnt(0)',
                  lambda: e('v_cmp_gt_u32 vcc, 4, v24'))
        for w in range(4):
            e(f'ds_read_b64 v[{112+2*w}:{113+2*w}], v22 offset:{L_ST+64*w}')
        e('s_waitcnt lgkmcnt(0)')
        e('v_add_f32 v20, v112, v114'); e('v_add_f32 v21, v116, v118'); e('v_add_f32 v20, v20, v21'); e('v_mul_f32 v20, 0x3e800000, v20')
        e('v_add_f32 v24, v113, v115'); e('v_add_f32 v21, v117, v119'); e('v_add_f32 v24, v24, v21')
        e('v_mov_b32 v21, 0')
        for w in range(4):
            e(f'v_sub_f32 v22, v{112+2*w}, v20'); e('v_fmac_f32 v21, v22, v22')
        e('v_fmac_f32 v24, 0x43000000, v21')
        e('v_mul_f32 v24, 0x3b000000, v24')
        self.ln_fin(20, 24)
        for i in range(16):
            e(f'v_sub_f32 v{LN+i}, v{LN+i}, v20'); self.rnd(LN + i, LN + i)
            e(f'v_mul_f32 v{LN+i}, v{LN+i}, v24'); self.rnd(LN + i, LN + i)

        e('L_g2:')
        l = self.lab('fl')
        e('s_cmp_ge_u32 s2, s73'); e(f's_cbranch_scc0 {l}')
        e('s_waitcnt vmcnt(0)'); e('v_cmp_eq_u32 vcc, 0, v31'); e(f's_cbranch_vccz {l}')
        self.poll(lambda: e(f'buffer_load_dword v31, v30, {SD}, 0 offen sc1'), 's_waitcnt vmcnt(0)',
                  lambda: e('v_cmp_eq_u32 vcc, 0, v31'), sleep=self.flagsleep)
        e(f'{l}:')
        e('v_mov_b32 v20, 0')
        self.if_w(0, lambda: e(f'ds_write_b32 v20, v9 offset:{L_FLG}'))
        self.stamp(14)
        self.stamp(15)
        e('v_lshrrev_b32 v18, 4, v0'); e('v_bfe_u32 v19, v0, 2, 2')
        e('v_lshrrev_b32 v20, 1, v19'); e('v_and_b32 v21, 1, v18'); e('v_lshl_add_u32 v20, v21, 1, v20')
        e('v_lshlrev_b32 v20, 5, v20')
        e('v_lshl_add_u32 v20, v18, 10, v20'); e('v_lshl_add_u32 v20, v19, 7, v20')
        e('v_and_b32 v21, 3, v0'); e('v_lshl_add_u32 v20, v21, 3, v20')
        e('v_add_u32 v40, s65, v20')
        for T in range(1, 4):
            e(f'v_xor_b32 v{40+T}, {32*T}, v40')
        for j in range(4):
            e(f's_waitcnt vmcnt({12-4*j}) lgkmcnt(0)')
            for T in range(4):
                for t in range(2):
                    d = A0 + (j * 4 + T) * 4 + 2 * t
                    e(f'ds_read_b64_tr_b16 v[{d}:{d+1}], v{40+T} offset:{(j&1)*4096+(j>>1)*32768+t*512}')
        e('s_waitcnt lgkmcnt(0)')
        self.stamp(16)
        e('s_cmp_eq_u32 s34, %d' % (9 if 'B' in self.abl else 2)); e('s_cselect_b32 s73, 16, 0x1000')
        e(f'v_and_b32 v30, {self.JC-1}, v0'); e('v_lshlrev_b32 v30, 2, v30')
        l = self.lab('fl')
        e('s_cmp_ge_u32 s2, s73'); e(f's_cbranch_scc0 {l}')
        e(f'buffer_load_dword v31, v30, {SD}, 0 offen offset:128 sc1')
        e(f'{l}:')
        e('s_cmp_lt_u32 s2, 48'); e('s_cbranch_scc1 L_g3')
        e('v_mov_b32 v20, 0')
        self.poll(lambda: e(f'ds_read_b32 v22, v20 offset:{L_FLG}'), 's_waitcnt lgkmcnt(0)',
                  lambda: e('v_cmp_eq_u32 vcc, 0, v22'), sleep=1)
        self.stamp(17)
        S, C = X, X + 8
        e('s_lshl_b32 s64, s34, 11'); e(f's_add_u32 s64, s64, {WS_MOD}'); e('s_add_u32 s66, s64, 8192')

        def modissue():
            for u in range(2):
                e(f'buffer_load_dwordx4 v[{S+4*u}:{S+4*u+3}], v1, {WS}, s64 offen offset:{1024*u} sc1')
                e(f'buffer_load_dwordx4 v[{C+4*u}:{C+4*u+3}], v1, {WS}, s66 offen offset:{1024*u} sc1')
        if 'A' in self.abl:
            pass
        elif 'a' in self.abl:
            modissue(); e('s_waitcnt vmcnt(0)')
        else:
            self.poll(modissue, 's_waitcnt vmcnt(0)', lambda: self.sent_check(range(S, S + 16), 22), sleep=self.modsleep)
        if self.diag == 1:
            e('s_add_u32 s88, s75, s100')
        self.stamp(6)
        for i in range(8):
            e(f'v_lshlrev_b32 v20, 16, v{C+i}'); e(f'v_and_b32 v21, s68, v{C+i}')
            e('v_add_f32 v20, 1.0, v20'); e('v_add_f32 v21, 1.0, v21')
            self.rnd(20, 20); self.rnd(21, 21)
            e(f'v_mul_f32 v20, v20, v{LN+2*i}'); e(f'v_mul_f32 v21, v21, v{LN+2*i+1}')
            self.rnd(20, 20); self.rnd(21, 21)
            e(f'v_lshlrev_b32 v22, 16, v{S+i}'); e(f'v_and_b32 v23, s68, v{S+i}')
            e('v_add_f32 v20, v20, v22'); e('v_add_f32 v21, v21, v23')
            e(f'v_cvt_pk_bf16_f32 v{B+i}, v20, v21')
        e('L_g3:')
        l = self.lab('fl')
        e('s_cmp_ge_u32 s2, s73'); e(f's_cbranch_scc0 {l}')
        e('s_waitcnt vmcnt(0)'); e('v_cmp_eq_u32 vcc, 0, v31'); e(f's_cbranch_vccz {l}')
        self.poll(lambda: e(f'buffer_load_dword v31, v30, {SD}, 0 offen offset:128 sc1'), 's_waitcnt vmcnt(0)',
                  lambda: e('v_cmp_eq_u32 vcc, 0, v31'), sleep=self.flagsleep)
        e(f'{l}:')
        e('s_nop 1')
        for u in range(2):
            for hi in range(2):
                for T in range(4):
                    a = A0 + ((2 * u + hi) * 4 + T) * 4
                    d = ACC + (hi * 4 + T) * 4
                    c = '0' if u == 0 else f'v[{d}:{d+3}]'
                    e(f'v_mfma_f32_16x16x32_bf16 v[{d}:{d+3}], v[{a}:{a+3}], v[{B+4*u}:{B+4*u+3}], {c}')
        e('v_and_b32 v20, 7, v0'); e(f'v_mul_u32_u24 v20, {RED_PITCH}, v20')
        e('v_and_b32 v21, 8, v0'); e('v_lshl_add_u32 v20, v21, 3, v20')
        e('v_and_b32 v21, 48, v0'); e('v_add_u32 v20, v20, v21')
        e(f's_mul_i32 s64, s34, {RED_W}'); e(f's_add_u32 s64, s64, {L_RED}'); e('v_add_u32 v20, s64, v20')
        e('s_nop 7')
        for s in range(2):
            for r in range(4):
                lo0, hi0 = ACC + (2 * s) * 4 + r, ACC + (4 + 2 * s) * 4 + r
                lo1, hi1 = ACC + (2 * s + 1) * 4 + r, ACC + (4 + 2 * s + 1) * 4 + r
                e(f'v_add_f32_dpp v{24+4*s+r}, v{hi0}, v{lo0} row_ror:8 row_mask:0xf bank_mask:0x3')
                e(f'v_add_f32_dpp v{24+4*s+r}, v{lo1}, v{hi1} row_ror:8 row_mask:0xf bank_mask:0xc')
            e(f'ds_write_b128 v20, v[{24+4*s}:{27+4*s}] offset:{128*s}')
        e('v_mov_b32 v20, 0')
        e('s_waitcnt lgkmcnt(0)')
        e('s_mov_b64 exec, 1')
        e(f'ds_add_u32 v20, v9 offset:{L_CNT}')
        e('s_mov_b64 exec, -1')
        self.stamp(18)
        e('s_cmp_eq_u32 s34, 0'); e('s_cbranch_scc0 L_waitq')
        e('s_cmp_lt_u32 s2, 16'); e('s_cbranch_scc0 L_gq2')
        e('v_and_b32 v21, 7, v0'); e('v_lshrrev_b32 v22, 4, v0'); e('v_and_b32 v23, 8, v0'); e('v_lshrrev_b32 v23, 1, v23')
        e('v_add_u32 v22, v22, v23')
        e('v_mov_b32 v23, v1')
        e('s_lshl_b32 s64, s72, 10'); e(f's_add_u32 s64, s64, {WS_MOD}')
        e('s_branch L_g4')
        e('L_gq2:')
        e('v_lshrrev_b32 v21, 3, v0'); e('v_and_b32 v22, 7, v0')
        e(f's_mov_b32 s64, {WS_BLK - 48*128}')
        e('s_cmp_lt_u32 s2, 48'); e(f's_cselect_b32 s64, {WS_BLK + 8192 - 16*128}, s64'); e(f's_mov_b32 s65, {BP}')
        e('v_mul_lo_u32 v23, s65, v21'); e('v_lshl_add_u32 v23, v22, 4, v23')
        e('s_lshl_b32 s66, s72, 7'); e('s_add_u32 s64, s64, s66')
        e('L_g4:')
        e(f'v_mul_u32_u24 v21, {RED_PITCH}, v21'); e('v_lshl_add_u32 v21, v22, 5, v21'); e(f'v_add_u32 v21, {L_RED}, v21')
        self.poll(lambda: e(f'ds_read_b32 v22, v20 offset:{L_CNT}'), 's_waitcnt lgkmcnt(0)',
                  lambda: e('v_cmp_gt_u32 vcc, 4, v22'))
        for w in range(4):
            for s in range(2):
                d = ACC + 8 * w + 4 * s
                e(f'ds_read_b128 v[{d}:{d+3}], v21 offset:{w*RED_W + 16*s}')
        self.stamp(19)
        e('s_waitcnt lgkmcnt(0)')
        for w in range(1, 4):
            for i in range(8):
                e(f'v_add_f32 v{ACC+i}, v{ACC+i}, v{ACC+8*w+i}')
        for i in range(4):
            e(f'v_cvt_pk_bf16_f32 v{24+i}, v{ACC+2*i}, v{ACC+2*i+1}')
        for i in range(4):
            e(f'v_min_u32 v{24+i}, -2, v{24+i}')
        if 'e' not in self.abl:
            e(f'buffer_store_dwordx4 v[24:27], v23, {WS}, s64 offen {self.pflags}')

    def ln_fin(self, mu, var):
        e = self.e
        self.rnd(var, var); self.rnd(mu, mu)
        e(f'v_add_f32 v{var}, 0x3727c5ac, v{var}')
        self.rnd(var, var)
        e(f'v_sqrt_f32 v{var}, v{var}'); e('s_nop 0')
        self.rnd(var, var)
        e(f'v_rcp_f32 v{var}, v{var}'); e('s_nop 0')

    def tail(self):
        e = self.e
        ACC, AOP = 64, 48
        self.ts(1)
        for w in range(4):
            e(f'ds_read_b64 v[{20+2*w}:{21+2*w}], v10 offset:{L_OP+512*w}')
        if self.GP == 5:
            l = self.lab('tk')
            e(f's_cmp_lt_u32 s2, {self.TKW}'); e(f's_cbranch_scc0 {l}')
            e('s_and_b32 s71, s2, 7'); e('s_lshl_b32 s71, s71, 9'); e(f's_add_u32 s71, s71, {WS_PRG + 256}')
            e('v_mov_b32 v28, 1'); e('s_mov_b64 exec, 1')
            e(f'buffer_atomic_add v28, off, {WS}, s71 sc0')
            e('s_mov_b64 exec, -1')
            e(f'{l}:')
        e('s_waitcnt lgkmcnt(2)')
        e('v_pk_add_f32 v[20:21], v[20:21], v[22:23]')
        e('s_waitcnt lgkmcnt(1)')
        e('v_pk_add_f32 v[20:21], v[20:21], v[24:25]')
        e('s_waitcnt lgkmcnt(0)')
        e('v_pk_add_f32 v[20:21], v[20:21], v[26:27]')
        e('v_cvt_pk_bf16_f32 v20, v20, v21')
        e('ds_write_b32 v11, v20')
        for j in range(2):
            e(f'ds_read_b128 v[{AOP+4*j}:{AOP+4*j+3}], v12 offset:{128*j}')
        sm = lambda j, T: e(f'v_smfmac_f32_16x16x64_bf16 v[{ACC+4*T}:{ACC+4*T+3}], v[{AOP+4*j}:{AOP+4*j+3}], v[{128+(j*8+T)*8}:{135+(j*8+T)*8}], v15')
        add = lambda T: e(f'v_add_f32 v{ACC+4*T}, v{ACC+4*T}, v{ACC+4*T+1}')
        cvt = lambda t: e(f'v_cvt_pk_bf16_f32 v{20+t}, v{ACC+8*t}, v{ACC+8*t+4}')
        e('s_waitcnt lgkmcnt(1)')
        for T in range(4):
            sm(0, T)
        e('s_waitcnt lgkmcnt(0)')
        for T in range(4):
            sm(1, T)
        for T in range(4, 8):
            sm(0, T)
        sm(1, 4); add(0); sm(1, 5); add(1); add(2); sm(1, 6); add(3); cvt(0); sm(1, 7); cvt(1)
        add(4); e('s_mov_b64 exec, 0xffff'); add(5); cvt(2); e('s_nop 0'); add(6); e('s_nop 0'); add(7); cvt(3)
        e(f'buffer_store_dwordx4 v[20:23], v13, {WS}, s69 offen sc1')
        e('s_mov_b64 exec, -1')
        self.ts(2)
        self.stamp(5)
        if self.GP == 2:
            self.gp()
        if self.GP == 5:
            self.gp_ticket()
        e('; ---- tail dispatch; reducer'); e('L_tail_s:')
        e('s_cmp_eq_u32 s74, -1'); e('s_cbranch_scc0 L_ffn')
        e('s_cmp_eq_u32 s3, 0'); e('s_cbranch_scc0 L_fin')
        e('s_sub_u32 s70, s2, 144'); e('s_cmp_lt_u32 s70, 64'); e('s_cbranch_scc0 L_fin')
        self.reducer()
        e('L_fin2:')
        self.fin()
        self.ffn()

    def gu_addr(self):
        e = self.e
        e('v_lshrrev_b32 v18, 4, v0'); e('v_bfe_u32 v19, v0, 2, 2'); e('v_bfe_u32 v20, v0, 1, 1')
        e('v_and_b32 v22, 1, v18'); e('v_lshl_add_u32 v22, v20, 1, v22'); e('v_xor_b32 v22, s34, v22')
        e('v_lshlrev_b32 v22, 4, v22'); e('v_lshl_add_u32 v22, v20, 15, v22')
        e('v_lshl_add_u32 v22, v18, 9, v22'); e('v_lshl_add_u32 v22, v19, 6, v22')
        e('v_and_b32 v20, 1, v0'); e('v_lshl_add_u32 v22, v20, 3, v22'); e(f'v_add_u32 v22, {L_BIG}, v22')

    def gu_read(self, a, b):
        e = self.e
        l = self.lab('gu')
        e('s_cmp_eq_u32 s73, 0'); e(f's_cbranch_scc1 {l}')
        for i in range(a, b):
            if i > a and (i - a) % 11 == 0:
                e('s_waitcnt lgkmcnt(4)')
            e(f'ds_read_b64_tr_b16 v[{128+2*i}:{129+2*i}], v22 offset:{2048*(i>>1)+256*(i&1)}')
        if self.LD:
            for T in range(8):
                e(f'v_add_u32 v{68+T}, {L_DN - L_BIG - 4096}, v{40+T}')
            if self.LDR == 0:
                e('s_waitcnt lgkmcnt(0)')
                for i in range(16):
                    if i == 11:
                        e('s_waitcnt lgkmcnt(4)')
                    e(self.dn_read(i))
        e(f'{l}:')

    def dn_dma(self):
        e = self.e
        if self.LDS_ is not None:
            e(f's_setprio {self.LDS_}')
        self.srd(SC, 's20', 's21', 1376 * 1024)
        e('v_lshrrev_b32 v18, 4, v0'); e('v_and_b32 v16, 15, v0'); e('v_xor_b32 v16, v16, v18'); e('v_xor_b32 v17, 4, v16')
        e('v_lshlrev_b32 v19, 10, v18'); e('v_lshl_add_u32 v22, v16, 4, v19'); e('v_lshl_add_u32 v23, v17, 4, v19')
        e('s_lshl_b32 s76, s74, 15'); e('s_lshl_b32 s66, s34, 8'); e('s_add_u32 s76, s76, s66')
        e('s_lshl_b32 s77, s34, 13'); e(f's_add_u32 s77, s77, {L_DN}')
        for q in range(8):
            t, g = q >> 2, q & 3
            e(f's_add_u32 m0, s77, {t*4096+g*1024}')
            e(f's_xor_b32 s66, s76, {(4*t + 8*(g&1) + 16*(g>>1))*1024}')
            if 'd' not in self.abl:
                e(f'buffer_load_dwordx4 v{22+(g&1)}, {SC}, s66 offen {self.wflags} lds')

    def dn_read(self, i):
        T, t = i >> 1, i & 1
        return f'ds_read_b64_tr_b16 v[{96+4*T+2*t}:{97+4*T+2*t}], v{68+T} offset:{4096*t}'

    def rpoll(self, k, load, n, base, acc, d, first_wait, hook):
        e = self.e
        lp, lx = self.lab('rp'), self.lab('rx')
        e('s_mov_b32 s75, 0')
        e(first_wait)
        P = self.PP[k]
        if self.NQ[k]:
            ln, lz = self.lab('rn'), self.lab('rz')
            for r in range(P - 1):
                for i in range(n):
                    load(i)
                e(f's_sleep {self.PG[k]}')
            e(f'{ln}:')
            for i in range(0, n, 2):
                e(f'v_smfmac_f32_16x16x64_bf16 v[{acc}:{acc+3}], v[44:47], v[{base+4*i}:{base+4*i+7}], v43')
            for i in range(n):
                load(i)
            e('s_add_u32 s75, s75, 1'); e('s_and_b32 s78, s75, 15')
            if n < 6:
                e(f's_nop {5-n}')
            for r in range(4):
                e(f'v_add_f32_dpp v{d}, v{acc+r}, v{acc+r} row_ror:8 row_mask:{0xc if r >> 1 else 0x3:#x} bank_mask:{0xc if r & 1 else 0x3:#x}')
            e(f'v_cmp_u_f32 vcc, v{d}, v{d}')
            e(f's_cbranch_vccz {lz}')
            for r in range(4):
                e(f'v_mov_b32 v{acc+r}, 0')
            e(f's_waitcnt vmcnt({n*(P-1)})')
            e(f's_cbranch_scc1 {ln}')
            self.sent_check(range(base, base + 4 * n), 2)
            e(f's_cbranch_vccz {lx}')
            e(f's_cmp_lt_u32 s75, {CAP:#x}'); e(f's_cbranch_scc1 {ln}')
            e(f'{lx}:')
            for i in range(0, n, 2):
                e(f'v_smfmac_f32_16x16x64_bf16 v[{acc}:{acc+3}], v[44:47], v[{base+4*i}:{base+4*i+7}], v43')
            e('s_nop 7')
            for r in range(4):
                e(f'v_add_f32_dpp v{d}, v{acc+r}, v{acc+r} row_ror:8 row_mask:{0xc if r >> 1 else 0x3:#x} bank_mask:{0xc if r & 1 else 0x3:#x}')
            e(f'{lz}:')
            hook()
            return
        if P > 1:
            self.sent_check(range(base, base + 4 * n), 2)
            e(f's_cbranch_vccz {lx}')
            if self.PM[k]:
                e('s_mov_b64 exec, vcc')
            for r in range(P - 1):
                for i in range(n):
                    load(i)
                e(f's_sleep {self.PG[k]}')
        e(f'{lp}:')
        self.sent_check(range(base, base + 4 * n), 2)
        e(f's_cbranch_vccz {lx}')
        if self.PM[k]:
            e('s_mov_b64 exec, vcc')
        for i in range(n):
            load(i)
        e('s_add_u32 s75, s75, 1'); e(f's_cmp_lt_u32 s75, {CAP:#x}')
        e(f's_waitcnt vmcnt({n*(P-1)})')
        e(f's_cbranch_scc1 {lp}')
        e(f'{lx}:')
        if self.PM[k]:
            e('s_mov_b64 exec, -1')
        hook()
        for i in range(0, n, 2):
            e(f'v_smfmac_f32_16x16x64_bf16 v[{acc}:{acc+3}], v[44:47], v[{base+4*i}:{base+4*i+7}], v43')
        e('s_nop 7')
        for r in range(4):
            e(f'v_add_f32_dpp v{d}, v{acc+r}, v{acc+r} row_ror:8 row_mask:{0xc if r >> 1 else 0x3:#x} bank_mask:{0xc if r & 1 else 0x3:#x}')

    def reducer(self):
        e = self.e
        e('s_lshl_b32 s64, s70, 2'); e('s_lshr_b32 s67, s35, s64'); e('s_and_b32 s71, s67, 7')
        e('s_andn2_b32 s66, s70, 7'); e('s_add_u32 s66, s66, s71'); e('s_lshl_b32 s66, s66, 12'); e(f's_add_u32 s66, s66, {WS_P1}')
        p1load = lambda i: e(f'buffer_load_dwordx4 v[{16+4*i}:{19+4*i}], v1, {WS}, s66 offen offset:{1024*i} sc1')
        for i in range(4):
            p1load(i)
        for r in range(32, 36):
            e(f'v_mov_b32 v{r}, -1')
        e('s_and_b32 s64, s71, 6'); e('s_lshl_b32 s64, s64, 12'); e('s_and_b32 s65, s71, 1'); e('s_lshl_b32 s65, s65, 15'); e('s_or_b32 s64, s64, s65')
        e('s_lshr_b32 s65, s70, 3'); e('s_lshl_b32 s65, s65, 16'); e('s_add_u32 s64, s64, s65')
        if self.SK:
            e('s_lshr_b32 s65, s70, 4'); e('s_lshl_b32 s65, s65, 2'); e('s_and_b32 s67, s70, 7'); e('s_add_u32 s65, s65, s67')
            e('s_lshl_b32 s65, s65, 7'); e('s_add_u32 s64, s64, s65')
        e(f's_add_u32 s64, s64, {WS_P2}'); e('s_add_u32 s65, s64, 4096')
        for i in range(6):
            if i == 5:
                e('s_mov_b64 exec, 0xffffff')
            e(f'buffer_store_dwordx4 v[32:35], v1, {WS}, s{64+(i>>2)} offen offset:{1024*(i&3)} sc1')
        e('s_mov_b64 exec, -1')
        e('v_lshlrev_b32 v2, 2, v0')
        for k in range(3):
            e(f'ds_read_b32 v{8+k}, v2 offset:{L_BIG + 256*k}')
        self.srd(SE, 's26', 's27', 8192)
        self.colmap()
        e('s_lshl_b32 s73, s70, 7')
        e('v_and_b32 v11, 1, v0'); e('v_lshlrev_b32 v3, 4, v11')
        e('v_mov_b32 v7, 0x3f80'); e('v_lshlrev_b32 v7, v3, v7')
        e('v_and_b32 v2, 4, v0'); e('v_cmp_eq_u32 vcc, 0, v2')
        e('v_bfe_u32 v2, v0, 1, 1'); e('v_mul_u32_u24 v43, 0xaaaa, v2'); e('v_add_u32 v43, 0x4444, v43')
        e('v_cndmask_b32 v44, 0, v7, vcc'); e('v_sub_u32 v45, v7, v44'); e('v_mov_b32 v46, v44'); e('v_mov_b32 v47, v45')
        for i in range(48, 56):
            e(f'v_mov_b32 v{i}, 0')
        e(f's_add_u32 s68, s73, {WS_X1}')
        e('s_mov_b32 s76, 0xaaaaaaaa'); e('s_mov_b32 s77, 0xaaaaaaaa')
        e('v_cmp_gt_u32 vcc, 24, v0'); e('v_mov_b32 v41, 0x40000000'); e('v_lshl_add_u32 v12, v11, 13, v6'); e('v_cndmask_b32 v41, v41, v1, vcc')
        self.rpoll(0, p1load, 4, 16, 48, 13, 's_waitcnt vmcnt(0) lgkmcnt(0)', lambda: (self.stamp(5), self.ts(3)))
        e('v_fmac_f32 v8, v13, v9')
        e('s_nop 1')
        e(f'v_mov_b32_dpp v14, v8 quad_perm:[1,1,3,3] {DPPF}')
        if self.X2:
            e(f'v_mov_b32_dpp v13, v8 quad_perm:[0,0,2,2] {DPPF}')
            e('v_cvt_pk_bf16_f32 v13, v13, v14')
            e(f'buffer_store_dword v13, v12, {WS}, s68 offen sc1')
        else:
            e('s_not_b64 exec, s[76:77]')
            e('v_cvt_pk_bf16_f32 v13, v8, v14')
            e(f'buffer_store_dword v13, v6, {WS}, s68 offen sc1')
            e('s_mov_b64 exec, -1')
        self.rnd(8, 8)
        self.stamp(6)
        self.ts(4)
        p2load = lambda i: e(f'buffer_load_dwordx4 v[{64+4*i}:{67+4*i}], v{41 if i == 5 else 1}, {WS}, s{64+(i>>2)} offen offset:{1024*(i&3)} sc1')
        for i in range(6):
            p2load(i)
        self.rpoll(2, p2load, 6, 64, 52, 13, 's_waitcnt vmcnt(0)', lambda: (self.stamp(7), self.ts(5)))
        e('v_fmac_f32 v8, v13, v10')
        e('s_nop 1')
        e(f'v_mov_b32_dpp v14, v8 quad_perm:[1,1,3,3] {DPPF}')
        e('s_not_b64 exec, s[76:77]')
        e('v_cvt_pk_bf16_f32 v13, v8, v14')
        if 'o' not in self.abl:
            e(f'buffer_store_dword v13, v6, {SE}, s73 offen {self.outflags}')
        if self.HP and self.HC:
            e('s_mov_b64 exec, -1'); e('s_cmp_lt_u32 s70, 8'); e('s_cbranch_scc0 L_fin2')
            e('s_mov_b64 exec, 0xffffff' if self.GP == 5 else 's_mov_b64 exec, 0xffff')
            e(f'buffer_store_dwordx4 v[44:47], v1, {WS}, s62 offen sc1')
        e('s_mov_b64 exec, -1')

    def ffn(self):
        e = self.e
        ACC = 64
        if self.AL:
            e('.p2align 7')
            for k in range(self.AL - 1):
                e('s_nop 0'); e('s_nop 0')
        e('; ---- FFN role'); e('L_ffn:')
        e(f's_mul_i32 s67, s3, {BP}'); e(f's_add_u32 s67, s67, {WS_BLK + 8192 + 1024}')
        e('v_lshlrev_b32 v7, 3, v0')
        if self.diag == 2:
            l = self.lab('dg'); e('s_cmp_lt_u32 s3, 4'); e(f's_cbranch_scc0 {l}'); self.ts(7); e(f'{l}:')

        def cissue():
            for i in range(2):
                e(f'buffer_load_dwordx4 v[{8+4*i}:{11+4*i}], v1, {WS}, s67 offen offset:{1024*i} sc1')
        cissue()
        npost = 16 - self.NPRE - self.NS - self.NT
        l, l2 = self.lab('post'), self.lab('post')
        e('s_cmp_lt_u32 s3, 4'); e(f's_cbranch_scc1 {l}')
        if self.GTF:
            self.gate(self.GTF, 28)
        self.ffn_slab(16 - npost, 16, 16)
        e(f's_waitcnt vmcnt({npost})')
        e(f's_branch {l2}')
        e(f'{l}:')
        self.ffn_slab(16 - npost - self.NT, 16 - npost, 16)
        if self.LD == 1:
            self.dn_dma()
        e(f's_waitcnt vmcnt({self.NT + (8 if self.LD == 1 else 0)})')
        self.ts(8)
        e(f'{l2}:')
        l = self.lab('cb')
        self.sent_check(range(8, 16), 16)
        e(f's_cbranch_vccz {l}')
        self.poll(cissue, 's_waitcnt vmcnt(0)', lambda: self.sent_check(range(8, 16), 16))
        e(f'{l}:')
        SBR, CBR = 24, 32
        e('s_mov_b32 s68, 0xffff0000')
        for i in range(4):
            e(f'v_lshlrev_b32 v{SBR+2*i}, 16, v{8+i}'); e(f'v_and_b32 v{SBR+2*i+1}, s68, v{8+i}')
            e(f'v_lshlrev_b32 v{CBR+2*i}, 16, v{12+i}'); e(f'v_and_b32 v{CBR+2*i+1}, s68, v{12+i}')
        for i in range(8):
            e(f'v_add_f32 v{CBR+i}, 1.0, v{CBR+i}')
        e('v_lshrrev_b32 v2, 3, v0'); e('v_bfe_u32 v3, v0, 1, 3'); e('v_and_b32 v4, 3, v3')
        e('s_lshl_b32 s64, s3, 1'); e('v_xor_b32 v3, s64, v3')
        e('v_lshlrev_b32 v5, 10, v2'); e('v_lshl_add_u32 v5, v4, 8, v5'); e('v_lshl_add_u32 v5, v3, 4, v5')
        e('v_and_b32 v4, 1, v0'); e('v_lshl_add_u32 v5, v4, 3, v5'); e(f'v_add_u32 v5, {L_H2}, v5'); e('v_xor_b32 v6, 16, v5')
        e('v_mul_u32_u24 v16, 0xaaaa, v4'); e('v_add_u32 v16, 0x4444, v16')
        e('v_lshrrev_b32 v2, 4, v0'); e('v_bfe_u32 v3, v0, 3, 1')
        e('v_xor_b32 v7, v2, v0'); e('v_lshlrev_b32 v7, 4, v7'); e(f'v_add_u32 v7, {L_H2}, v7'); e('v_xor_b32 v8, 64, v7')
        e('v_and_b32 v4, 7, v0'); e('v_and_b32 v9, 0x38, v0'); e('v_lshlrev_b32 v9, 3, v9'); e('v_lshl_add_u32 v9, v4, 1, v9')
        e('s_lshl_b32 s64, s34, 4'); e('v_add_u32 v9, s64, v9')
        e('v_and_b32 v10, 12, v0'); e('v_lshlrev_b32 v10, 5, v10'); e('v_and_b32 v4, 1, v0'); e('v_lshl_add_u32 v10, v4, 6, v10'); e('v_lshl_add_u32 v10, v2, 4, v10')
        e('v_mov_b32 v17, 0xbfb8aa3b')
        for i in range(4):
            e(f'v_mov_b32 v{ACC+i}, 0')
        e('s_lshl_b32 s64, s34, 3'); e('s_lshr_b32 s64, s35, s64'); e('v_lshlrev_b32 v3, 2, v3'); e('v_bfe_u32 v3, s64, v3, 3')
        e('v_and_b32 v11, 6, v3'); e('v_lshlrev_b32 v11, 12, v11'); e('v_and_b32 v3, 1, v3'); e('v_lshl_add_u32 v11, v3, 15, v11')
        e('v_lshl_add_u32 v11, v2, 17, v11'); e(f'v_and_b32 v4, {0xf0 if self.SK else 0x70}, v1'); e('v_add_u32 v11, v11, v4')
        if self.SK:
            e('v_lshl_add_u32 v11, v2, 9, v11'); e('s_lshl_b32 s64, s34, 8'); e('v_add_u32 v11, s64, v11')
        e('s_lshl_b32 s69, s74, 7'); e(f's_add_u32 s69, s69, {WS_P2}'); e('s_add_u32 s72, s69, 65536')
        e('s_lshl_b32 s64, s3, 10')
        if self.X2:
            e('s_lshl_b32 s65, s2, 2'); e('s_lshr_b32 s65, s35, s65'); e(f's_and_b32 s65, s65, 2'); e('s_lshl_b32 s65, s65, 12'); e('s_add_u32 s64, s64, s65')
        e(f's_add_u32 s64, s64, {WS_X1}')
        e('v_mov_b32 v14, 0xbb000000'); e('v_mov_b32 v15, 0x3b000000')
        X, Dd, DC = 56, 40, 48
        xload = lambda i: e(f'buffer_load_dwordx4 v[{X}:{X+3}], v1, {WS}, s64 offen sc1')
        self.gu_addr()
        e('s_lshr_b32 s73, s3, 2')
        if self.LD == 1 and self.LDW:
            l = self.lab('ldw'); e('s_cmp_lt_u32 s3, 4'); e(f's_cbranch_scc1 {l}'); e('s_waitcnt vmcnt(0)'); e(f'{l}:')
        else:
            e('s_waitcnt vmcnt(0)')
        if self.diag == 2:
            l = self.lab('dg'); e('s_cmp_lt_u32 s3, 4'); e(f's_cbranch_scc0 {l}'); self.ts(6); e(f'{l}:')
        e('s_barrier')
        self.stamp(8)
        self.ts(3)
        l = self.lab('x')
        if self.XF:
            xload(0)
        self.gu_read(0, 32)
        if self.TP is not None:
            e(f's_setprio {self.TP}')
        if self.LD == 2:
            l3, l4 = self.lab('dma'), self.lab('dma')
            e('s_cmp_lt_u32 s3, 4'); e(f's_cbranch_scc0 {l3}')
            self.dn_dma()
            e('s_waitcnt vmcnt(8)'); e(f's_branch {l4}')
            e(f'{l3}:'); e('s_waitcnt vmcnt(0)'); e(f'{l4}:')
        e('s_mov_b32 s73, 0x3f803f80'); e('v_mov_b32 v20, 0'); e('v_mov_b32 v21, 0')
        if self.XF:
            if self.LD != 2:
                e('s_waitcnt vmcnt(0)')
            self.sent_check(range(X, X + 4), 12); e(f's_cbranch_vccz {l}')
        self.ppoll(1, xload, 1, X, 12)
        e(f'{l}:')
        self.stamp(6)
        self.ts(4)
        pr = lambda r: f'v[{r}:{r+1}]'
        if self.TP is not None:
            e('s_setprio 3')
        for i in range(4):
            e(f'v_dot2c_f32_bf16 v20, s73, v{X+i}'); e(f'v_dot2c_f32_bf16 v21, v{X+i}, v{X+i}')
        fill = []
        for i in range(4):
            fill += [f'v_lshlrev_b32 v{Dd+2*i}, 16, v{X+i}', f'v_and_b32 v{Dd+2*i+1}, s68, v{X+i}']
        fill += [f'v_pk_mul_f32 {pr(DC+i)}, {pr(Dd+i)}, {pr(CBR+i)}' for i in range(0, 8, 2)]

        def gap(n=2):
            for k in range(n):
                e(fill.pop(0) if fill else 's_nop 0')
        gap(3)
        e('v_permlane32_swap_b32 v20, v21')
        e('v_add_f32 v12, v20, v21'); gap()
        for dpp in ['quad_perm:[1,0,3,2]', 'quad_perm:[2,3,0,1]', 'row_ror:4', 'row_ror:8']:
            e(f'v_add_f32_dpp v12, v12, v12 {dpp} {DPPF}'); gap()
        e(f'v_add_f32_dpp v12, v12, v12 row_bcast:15 row_mask:0xa bank_mask:0xf'); e('s_nop 0')
        e('v_readlane_b32 s70, v12, 16'); e('v_readlane_b32 s71, v12, 48')
        e('s_nop 0')
        e('v_mul_f32 v12, s70, v14'); e('v_mul_f32 v13, s71, v15')
        e('v_fma_f32 v13, -v12, v12, v13'); e('v_max_f32 v13, 0, v13'); e('v_add_f32 v13, 0x3727c5ac, v13')
        e('v_rsq_f32 v2, v13')
        for i in range(0, 8, 2):
            e(f'v_pk_fma_f32 {pr(DC+i)}, v[12:13], {pr(CBR+i)}, {pr(DC+i)} op_sel_hi:[0,1,1]')
        for i in (0, 4, 2, 6):
            e(f'v_pk_fma_f32 {pr(SBR+i)}, v[2:3], {pr(DC+i)}, {pr(SBR+i)} op_sel_hi:[0,1,1]')
        e(f'v_cvt_pk_bf16_f32 v40, v{SBR}, v{SBR+1}'); e(f'v_cvt_pk_bf16_f32 v41, v{SBR+4}, v{SBR+5}')
        e('ds_write_b64 v5, v[40:41]')
        e(f'v_cvt_pk_bf16_f32 v42, v{SBR+2}, v{SBR+3}'); e(f'v_cvt_pk_bf16_f32 v43, v{SBR+6}, v{SBR+7}')
        e('ds_write_b64 v6, v[42:43]')
        e('s_cmp_lt_u32 s3, 4')
        if self.LD == 2 and self.LDR == 1:
            l = self.lab('dw')
            e(f's_cbranch_scc0 {l}'); e('s_waitcnt vmcnt(0)'); e(f'{l}:')
        e('s_waitcnt lgkmcnt(0)')
        self.ts(5)
        e('s_barrier')
        e('s_cbranch_scc1 L_bar_fin')
        self.ts(6)
        B = 192
        for j in range(8):
            e(f'ds_read_b128 v[{B+4*j}:{B+4*j+3}], v{7+(j&1)} offset:{1024*j}')
        for j in range(8):
            late = self.LD and self.LDR == 1
            e(f's_waitcnt lgkmcnt({7-j + (2*j if late else 0)})')
            e(f'v_smfmac_f32_16x16x64_bf16 v[{ACC}:{ACC+3}], v[{B+4*j}:{B+4*j+3}], v[{128+8*j}:{135+8*j}], v16')
            if late:
                e(self.dn_read(2 * j)); e(self.dn_read(2 * j + 1))
        e('s_nop 7')
        e(f'v_add_f32 v{ACC+2}, v{ACC+2}, v{ACC+3}'); e(f'v_add_f32 v{ACC}, v{ACC}, v{ACC+1}')
        e(f'v_mul_f32 v18, v{ACC}, v17')
        e(f'v_mul_f32_dpp v18, v{ACC+2}, v17 row_ror:8 row_mask:0xf bank_mask:0xc')
        e('v_exp_f32 v18, v18')
        e(f'v_mov_b32_dpp v{ACC+2}, v{ACC} row_ror:8 row_mask:0xf bank_mask:0x3')
        e('v_add_f32 v18, 1.0, v18')
        e('v_rcp_f32 v18, v18'); e('s_nop 0')
        e(f'v_mul_f32 v18, v18, v{ACC+2}')
        e('v_cvt_pk_bf16_f32 v18, v18, v18')
        e(f'ds_write_b16 v9, v18 offset:{L_HH}')
        e('s_waitcnt lgkmcnt(0)')
        self.ts(7)
        e('s_barrier')
        e(f'ds_read_b128 v[48:51], v10 offset:{L_HH}')
        mm = lambda T: e(f'v_mfma_f32_16x16x32_bf16 v[{192+4*T}:{195+4*T}], v[48:51], v[{96+4*T}:{99+4*T}], 0')
        cv = lambda i, r: e(f'v_cvt_pk_bf16_f32 v{16+4*r+i}, v{192+8*i+r}, v{196+8*i+r}')
        if self.LD and self.LDR == 2:
            for i in range(12):
                e(self.dn_read(i))
            w = lambda n: e(f's_waitcnt lgkmcnt({n})')
            w(10); mm(0); e(self.dn_read(12)); e(self.dn_read(13)); w(10); mm(1); e(self.dn_read(14)); e(self.dn_read(15)); w(10); mm(2)
            w(8); mm(3); w(6); mm(4); e('s_nop 0'); cv(0, 0); w(4); mm(5); cv(0, 1); w(2); mm(6)
            cv(1, 0); cv(1, 1); w(0); mm(7); e('s_nop 2'); cv(2, 0); cv(2, 1); e('s_nop 2'); cv(3, 0)
        else:
            e('s_waitcnt lgkmcnt(0)')
            mm(0); mm(1); mm(2); e('s_nop 1'); mm(3); e('s_nop 1'); mm(4); e('s_nop 0'); cv(0, 0); mm(5); cv(0, 1); mm(6)
            cv(1, 0); cv(1, 1); mm(7); e('s_nop 2'); cv(2, 0); cv(2, 1); e('s_nop 2'); cv(3, 0)
        e(f'buffer_store_dwordx4 v[16:19], v11, {WS}, s69 offen sc1')
        cv(3, 1)
        e(f'buffer_store_dwordx4 v[20:23], v11, {WS}, s72 offen sc1')
        self.stamp(7)
        self.ts(8)
        self.fin()
        e('L_bar_fin:')
        if self.LD and self.LDR == 2:
            e('s_waitcnt vmcnt(0)')
        e('s_barrier')


def gen(**kw):
    return Gen(**kw).build()


if __name__ == '__main__':
    hdr = open(f'/code/{NAME}.s.ref').read().split('; Override launch')[0]
    out = sys.argv[1] if len(sys.argv) > 1 else f'/code/{NAME}.s'
    kw = {}
    for a in sys.argv[2:]:
        k, v = a.split('=')
        kw[k] = eval(v)
    open(out, 'w').write(hdr + gen(**kw))
```

```python
import sys

NAME = 'adaLN_cond__sliding_block_cached__glu_gated_glu__decode'

WS_MOD = 0x0
WS_BLK = 0x4000
BP = 12288
WS_P1 = 0x100000
WS_X1 = 0x140000
WS_PRG = 0x144000
GAP = WS_P1 - (WS_BLK + 8 * BP)
WS_RACE = 0x148000
WS_P2 = 0x150000
WS_END = WS_P2 + 8 * 65536
WS_STAMP = 0x3000000
L_ML = 0x100
L_CNT = 0x140
L_FLG = 0x144
L_CNT2 = 0x14c
L_RT = 0x148
L_GATE = 0x150
L_ST = 0x000
L_OP = 0x200
L_OB = 0xA00
L_HH = 0xE00
L_BIG = 0x1000
L_RED = L_BIG
L_EXT = 0x11000
L_H2 = L_EXT
L_DN = L_EXT + 8192
RED_W = 8192
RED_PITCH = 272

WS = 's[36:39]'
SA = 's[40:43]'
SB = 's[44:47]'
SC = 's[48:51]'
SD = 's[52:55]'
SE = 's[56:59]'
CAP = 0x100000
DPPF = 'row_mask:0xf bank_mask:0xf'


DOC = """
Written with tools/gen.py (hand-written generator).  One launch, workgroup (b, h) = (id >> 5, id & 31), 8 waves:
  waves 0-3 (S) stream the K and V windows through a register ring: q.K by v_dot2, true-max softmax, p.V by MFMA
  waves 4-7 (H) do the small GEMMs and keep this head's wo rows in registers
Extra roles: id 0-47 mod = silu(c) @ w_mod; 48-111 LN1 + q = h @ wq; 112-143 clear the hand-off slots;
  144-207 reduce the wo partials (x1) and the w_down partials (output); 43 of 208-255 LN2 + a 32-column FFN slice
  (gate/up on the H waves, w_down on the S waves; these weights are read after the workgroup's own stream).
Hand-offs through d_ws: this launch first fills every slot with 0xffffffff (write-through, acknowledged), then raises
  flags in d_debug; writers and readers look at those flags before they touch a slot (the last inboxes are instead
  filled by their reader before it sends the value their writers wait for), and after that every data
  dword is its own flag (write-through stores, cache-bypassing polls), so nothing depends on placement or on what
  d_ws held before.  All spins are bounded.  Loads whose result is dropped only warm L2 for the current launch
  (weights, and the last V tiles of a slower workgroup, found from progress marks written in this launch).
Which of the cleared slots a reader uses is a permutation that all workgroups derive from the same d_debug flags; it
  puts a slot on the memory half its reader reaches faster (probed within the launch) and only affects speed.
"""


class Gen:
    def __init__(self,
                 D=5, D0=4, DS=((0, 4), (32, 5), (90, 6)), D2=7, FU=(40, 30, 50, 30, 0), FN=20, FX=40,
                 FA=56, FU2=(112, 72, 0, 64, 112, 64), WB=(0, 0, 0, 0), WB2=(0, 0, 0, 0), DE=8, JE=124, XC=False,
                 NL=15, budget=15, QS=0, PVC=6, QJ=None, JJ=None,
                 perm=(0, 1, 6, 3, 7, 5, 2, 8, 9, 4), permV=(7, 4, 5, 8, 2, 9), cols=(4, 8, 16, 32, 64, 128, 256, 512),
                 QL=(), DB=None, HP=208, HE=6, HM=(78, 8), HL=12, HN=4, HG=2, HC=1, GP=2, G0=16, GT=0, GTF=0, GB=0, GS=6, GC=12, TK0=24, TKN=32, TKW=144,
                 HD=3, HDF=3, FD=1, QD=3, PD=2, UD=16, PC=1, DD=8, NPRE=0, NS=0, NT=0, downfirst=True, LD=2, LDP=2, LDR=3, LDW=0, LDS_=None, LDQ=7, LDX=1, LDN=0, hprio=2, P0=True, P3='d', prefetch=True,
                 wperm=(1, 2, 3, 4, 5, 6), wcw=(0, 0), wcols=(0,) * 8,
                 kvflags='nt', wflags='', gflags='', fflags='', outflags='sc1', cflags='sc1', pflags='sc1', hpflags='',
                 OA=0, JC=32, pol=None, X4=(0, 0), X2=2, SK=True, NQ=(1, 0, 1), SN=0, XF=2, AL=0, TP=None,
                 modsleep=4, flagsleep=40, PP=(4, 2, 3), PG=(1, 1, 1), PM=(0, 0, 0), PS=(0, 0, 0), PI=(0, 0, 0),
                 diag=0, calib=0, calibwg=None, amp=None, jitter=None, abl='', TB=None):
        self.__dict__.update(locals())
        self.L = []
        self.uid = 0
        self.RG = 62
        if self.DB:
            assert self.HP and self.HM[0] < 64 and self.JJ and self.JJ < self.HM[0] <= self.DB[0] - self.D2
            self.FU2 = (self.JE,) * 6
        if self.permV is None or sorted(self.permV) != sorted(self.perm[4:]):
            self.permV = self.perm[4:]
        self.permV = tuple(self.permV)
        assert not self.LD or self.NL >= 10
        if self.QJ is None:
            self.QJ = self.RG + self.NL - max(self.D, self.D2) - 2

    def e(self, s):
        self.L.append(s)

    def fin(self):
        self.e('s_branch L_fin' if (self.diag or self.amp or self.calib) else 's_endpgm')

    def lab(self, base):
        self.uid += 1
        return f'L_{base}_{self.uid}'

    def srd(self, name, lo, hi, nbytes):
        b = int(name[2:name.index(':')])
        e = self.e
        e(f's_mov_b32 s{b}, {lo}'); e(f's_mov_b32 s{b+1}, {hi}')
        e(f's_mov_b32 s{b+2}, {nbytes:#x}'); e(f's_mov_b32 s{b+3}, 0x20000')

    def ts(self, i):
        if self.diag == 2:
            self.e(f's_memrealtime s[{80+2*i}:{81+2*i}]')

    def stamp(self, i, mode=1):
        if self.amp and mode == 1 and i == self.amp[0]:
            self.e('s_memrealtime s[96:97]')
        if self.diag == mode:
            self.e('s_memrealtime s[78:79]')
            self.e('s_waitcnt lgkmcnt(0)')
            self.e(f's_mov_b32 s{80+i}, s78')

    def rnd(self, d, s):
        self.e(f'v_cvt_pk_bf16_f32 v{d}, 0, v{s}')

    def sent_check(self, regs, t):
        e = self.e
        regs = list(regs)
        if len(regs) == 1:
            e(f'v_cmp_eq_u32 vcc, -1, v{regs[0]}')
            return
        if len(regs) == 2:
            e(f'v_max_u32 v{t}, v{regs[0]}, v{regs[1]}'); rest = []
        else:
            e(f'v_max3_u32 v{t}, v{regs[0]}, v{regs[1]}, v{regs[2]}'); rest = regs[3:]
        while rest:
            if len(rest) >= 2:
                e(f'v_max3_u32 v{t}, v{t}, v{rest[0]}, v{rest[1]}'); rest = rest[2:]
            else:
                e(f'v_max_u32 v{t}, v{t}, v{rest[0]}'); rest = rest[1:]
        e(f'v_cmp_eq_u32 vcc, -1, v{t}')

    def poll(self, issue, wait, check, sleep=0, again=None):
        e = self.e
        lp, lx = self.lab('poll'), self.lab('pollx')
        e('s_mov_b32 s75, 0')
        e(f'{lp}:')
        issue()
        e(wait)
        check()
        e(f's_cbranch_vccz {lx}')
        if again:
            again()
        if sleep:
            e(f's_sleep {sleep}')
        e('s_add_u32 s75, s75, 1'); e(f's_cmp_lt_u32 s75, {CAP * (16 if "lgkm" in wait else 1):#x}'); e(f's_cbranch_scc1 {lp}')
        e(f'{lx}:')

    def ppoll(self, k, load, nld, base, t):
        e = self.e
        P = self.PP[k]
        regs = range(base, base + 4 * nld)
        if self.PI[k]:
            e(f's_sleep {self.PI[k]}')

        def issue():
            for i in range(nld):
                load(i)
        for i in range(P - 1):
            issue()
            e(f's_sleep {self.PG[k]}')
        if self.PM[k] < 2:
            self.poll(issue, f's_waitcnt vmcnt({nld*(P-1)})', lambda: self.sent_check(regs, t), sleep=self.PS[k],
                      again=(lambda: e('s_mov_b64 exec, vcc')) if self.PM[k] else None)
            if self.PM[k]:
                e('s_mov_b64 exec, -1')
            return
        m = lambda i: f's[{4+2*i}:{5+2*i}]'
        for i in range(nld):
            e(f's_mov_b64 {m(i)}, -1')

        def missue():
            for i in range(nld):
                l = self.lab('mk')
                e(f's_mov_b64 exec, {m(i)}')
                if P == 1:
                    e(f's_cbranch_execz {l}')
                load(i)
                e(f'{l}:')
            e('s_mov_b64 exec, -1')

        def mcheck():
            for i in range(nld):
                r = base + 4 * i
                e(f'v_max3_u32 v{t}, v{r}, v{r+1}, v{r+2}'); e(f'v_max_u32 v{t}, v{t}, v{r+3}')
                e(f'v_cmp_eq_u32 {m(i)}, -1, v{t}')
            e(f's_or_b64 vcc, {m(0)}, {m(1)}')
            for i in range(2, nld):
                e(f's_or_b64 vcc, vcc, {m(i)}')
        self.poll(missue, f's_waitcnt vmcnt({nld*(P-1)})', mcheck, sleep=self.PS[k])

    def allreduce_rows(self, op, v, t):
        e = self.e
        e(f'v_mov_b32 v{t}, v{v}'); e('s_nop 1')
        e(f'v_permlane16_swap_b32 v{v}, v{t}'); e('s_nop 1')
        e(f'{op} v{v}, v{v}, v{t}')
        e(f'v_mov_b32 v{t}, v{v}'); e('s_nop 1')
        e(f'v_permlane32_swap_b32 v{v}, v{t}'); e('s_nop 1')
        e(f'{op} v{v}, v{v}, v{t}')

    def build(self):
        e = self.e
        e(f'; @launch grid=(256,1,1) block=(512,1,1) lds={L_EXT + 4096 * max(self.NL, 4)}')
        for l in DOC.strip().split('\n'):
            e('; ' + l)
        e('.amdgcn_target "amdgcn-amd-amdhsa--gfx950"')
        e('.text'); e(f'.globl {NAME}_kernel'); e('.p2align 8'); e(f'.type {NAME}_kernel,@function')
        e(f'{NAME}_kernel:')
        e('L_code_begin:')
        if self.amp:
            e('s_mov_b32 s96, 0')
        if self.diag or self.calib or self.amp or self.TB:
            e('s_memrealtime s[100:101]')
        e('s_load_dwordx16 s[4:19], s[0:1], 0')
        e('s_load_dwordx8 s[20:27], s[0:1], 64')
        e('s_load_dwordx4 s[28:31], s[0:1], 96')
        e('s_cmpk_ge_u32 s2, 256'); e('s_cbranch_scc1 L_end')
        if self.jitter:
            mul, mask = self.jitter
            e(f's_mul_i32 s64, s2, {mul}'); e('s_lshr_b32 s64, s64, 5'); e(f's_and_b32 s64, s64, {mask}')
            e('L_jit:'); e('s_sub_u32 s64, s64, 1'); e('s_cbranch_scc1 L_jitx'); e('s_sleep 64'); e('s_branch L_jit'); e('L_jitx:')
        e('v_lshrrev_b32 v1, 6, v0')
        e('v_and_b32 v0, 63, v0')
        e('v_readfirstlane_b32 s3, v1')
        e('v_lshlrev_b32 v1, 4, v0')
        if self.diag:
            for i in range(81, 100):
                e(f's_mov_b32 s{i}, 0')
        e('s_lshl_b32 s64, s2, 20'); e('s_add_u32 s64, s64, 0xC0000')
        e('s_mov_b32 s42, 0x40000'); e('s_mov_b32 s43, 0x20000')
        e('s_and_b32 s34, s3, 3')
        e('s_cmp_ge_u32 s3, 4')
        e('s_cbranch_scc1 L_helper')
        self.s_wave(0)
        self.h_wave()
        if 't' in self.abl:
            e('s_branch L_fin')
        self.tail()
        self.fin()
        self.s_wave(1)
        e('L_fin:')
        if self.amp:
            ev, E0, lo, hi = self.amp
            self.stamp(9)
            e('s_waitcnt lgkmcnt(0)')
            e(f's_sub_u32 s94, s3, {lo}'); e(f's_cmp_lt_u32 s94, {hi-lo}'); e('s_cbranch_scc0 L_end')
            e('s_cmp_eq_u32 s96, 0'); e('s_cbranch_scc1 L_end')
            e('s_sub_u32 s96, s96, s100'); e('s_mul_i32 s96, s96, 10'); e(f's_add_u32 s96, s96, {3000 - int(E0*1000)}')
            e('s_min_i32 s96, s96, 30000')
            e('L_amp:'); e('s_sleep 4'); e('s_memrealtime s[94:95]'); e('s_waitcnt lgkmcnt(0)')
            e('s_sub_u32 s94, s94, s100'); e('s_cmp_lt_i32 s94, s96'); e('s_cbranch_scc1 L_amp')
        if self.calib:
            e('s_cmp_eq_u32 s3, 5'); e('s_cbranch_scc0 L_end')
            if self.calibwg is not None:
                e(f's_cmp_eq_u32 s2, {self.calibwg}'); e('s_cbranch_scc0 L_end')
            e('L_cal:'); e('s_memrealtime s[80:81]'); e('s_waitcnt lgkmcnt(0)')
            e('s_sub_u32 s80, s80, s100'); e(f's_cmp_lt_u32 s80, {self.calib*100}'); e('s_cbranch_scc1 L_cal')
        if self.diag:
            e('s_lshl_b32 s64, s2, 3'); e('s_add_u32 s64, s64, s3'); e('s_lshl_b32 s64, s64, 7'); e(f's_add_u32 s64, s64, {WS_STAMP}')
            e('v_lshlrev_b32 v2, 2, v0')
            self.stamp(9)
            if self.diag > 1:
                e('s_memrealtime s[98:99]'); e('s_waitcnt lgkmcnt(0)')
            for i in range(20):
                e(f'v_writelane_b32 v4, s{80+i}, {i}')
            e('s_getreg_b32 s80, hwreg(HW_REG_HW_ID)'); e('s_getreg_b32 s81, hwreg(HW_REG_XCC_ID)')
            e('v_writelane_b32 v4, s80, 20'); e('v_writelane_b32 v4, s81, 21')
            e('s_sleep 127'); e('s_sleep 127')
            e('s_mov_b64 exec, 0x3fffff')
            e(f'buffer_store_dword v4, v2, {WS}, s64 offen')
        e('L_end:')
        e('s_endpgm')
        e('L_code_end:')
        e('.section .rodata,"a"'); e('.p2align 6'); e(f'.amdhsa_kernel {NAME}_kernel')
        e('  .amdhsa_next_free_vgpr 256'); e('  .amdhsa_next_free_sgpr 102'); e('  .amdhsa_accum_offset 256')
        e('  .amdhsa_group_segment_fixed_size 0'); e('  .amdhsa_kernarg_size 112'); e('  .amdhsa_user_sgpr_count 2')
        e('  .amdhsa_user_sgpr_kernarg_segment_ptr 1'); e('  .amdhsa_system_sgpr_workgroup_id_x 1')
        e('  .amdhsa_float_denorm_mode_32 3')
        e('.end_amdhsa_kernel')
        return '\n'.join(self.L) + '\n'

    def s_wave(self, part):
        if part == 1:
            self.L += self.s_rest
            return
        head = self.L
        e = self.e
        D = self.D

        pm = self.perm
        if pm[:2] != (0, 1):
            e('v_and_b32 v1, 0xf0, v1')
            e('v_bfe_u32 v2, v0, 4, 1'); e(f'v_lshl_add_u32 v1, v2, {8+pm[0]}, v1')
            e('v_lshrrev_b32 v2, 5, v0'); e(f'v_lshl_add_u32 v1, v2, {8+pm[1]}, v1')
        if pm[3] == pm[2] + 1:
            e(f's_lshl_b32 s65, s34, {8+pm[2]}')
        else:
            e('s_and_b32 s65, s34, 1'); e(f's_lshl_b32 s65, s65, {8+pm[2]}'); e('s_lshr_b32 s66, s34, 1'); e(f's_lshl_b32 s66, s66, {8+pm[3]}')
            e('s_or_b32 s65, s65, s66')
        self.wg_xor('s65', 's2', 's66')
        koffK = lambda j: sum(((j >> b) & 1) << (8 + pm[4 + b]) for b in range(6))
        koffV = lambda j: sum(((j >> b) & 1) << (8 + self.permV[b]) for b in range(6))
        koff = lambda j: koffK(j) if j < 64 else koffV(j - 64)
        tmap = lambda i: sum(((i >> b) & 1) << pm[4:].index(self.permV[b]) for b in range(6))
        e('s_waitcnt lgkmcnt(0)')
        e('s_add_u32 s40, s6, s64'); e('s_addc_u32 s41, s7, 0')
        e('s_add_u32 s44, s8, s64'); e('s_addc_u32 s45, s9, 0')
        D2 = self.D2 if any(self.FU) else D

        def set_boost(FU, FN, FX, t, WB=(0, 0, 0, 0)):
            e('s_cmp_eq_u32 s74, -1'); e(f's_mov_b32 s69, {FU[3]}'); e(f's_cselect_b32 s69, {FN}, s69')
            e(f's_cmp_lt_u32 s2, {112+self.JC}'); e(f's_cselect_b32 s69, {FU[4]}, s69')
            e('s_cmp_lt_u32 s2, 112'); e(f's_cselect_b32 s69, {FU[2]}, s69')
            e('s_cmp_lt_u32 s2, 48'); e(f's_cselect_b32 s69, {FU[1]}, s69')
            e('s_cmp_lt_u32 s2, 16'); e(f's_cselect_b32 s69, {FU[0]}, s69')
            if FX:
                e(f's_and_b32 {t}, s72, 7'); e(f's_cmp_eq_u32 {t}, 3'); e(f's_cselect_b32 {t}, {FX}, 0')
                e('s_cmp_lt_u32 s2, 112'); e(f's_cselect_b32 {t}, {t}, 0'); e(f's_add_u32 s69, s69, {t}')
            if any(WB):
                e(f's_lshl_b32 {t}, s34, 3'); e(f's_lshr_b32 {t}, {sum(w << (8 * i) for i, w in enumerate(WB)):#x}, {t}'); e(f's_and_b32 {t}, {t}, 0xff')
                e(f's_max_u32 s69, s69, {t}')

        def late_setup():
            self.common()
            e('s_mov_b32 s46, 0x40000'); e('s_mov_b32 s47, 0x20000')
            if D2 != D:
                set_boost(self.FU, self.FN, self.FX, 's66', self.WB)
        RG = self.RG
        free = [8 + 4 * i for i in range(RG)]
        slot = {}
        Q = 4
        sc = [None] * 16
        st = {}

        def q_load():
            e(f's_mul_i32 s68, s32, {BP}'); e('s_lshl_b32 s67, s33, 8'); e('s_add_u32 s68, s68, s67'); e(f's_add_u32 s68, s68, {WS_BLK}')
            e('v_and_b32 v2, 0xf0, v1')
            e(f'buffer_load_dwordx4 v[4:7], v2, {WS}, s68 offen sc1')

        def j_load(fl):
            e(f'v_and_b32 v2, {self.JC-1}, v0'); e('v_lshlrev_b32 v2, 2, v2')
            e(f'buffer_load_dword v3, v2, {SD}, 0 offen offset:128 {fl}')

        def j_check():
            l = self.lab('jf')
            e('v_cmp_eq_u32 vcc, 0, v3'); e(f's_cbranch_vccz {l}')
            self.poll(lambda: j_load('sc1'), 's_waitcnt vmcnt(0)', lambda: e('v_cmp_eq_u32 vcc, 0, v3'), sleep=self.flagsleep)
            e(f'{l}:')

        def w_q():
            self.stamp(1)
            l = self.lab('q')
            self.sent_check(range(4, 8), 2 if self.DB else 3)
            e(f's_cbranch_vccz {l}')
            if 'q' in self.abl or 'e' in self.abl:
                e(f's_branch {l}')
            self.poll(q_load, 's_waitcnt vmcnt(0)', lambda: self.sent_check(range(4, 8), 2 if self.DB else 3))
            e(f'{l}:')
            e('s_mov_b32 s66, 0x3db504f3')
            self.stamp(2)

        inlds = {}

        def fetch(tiles):
            n = 0
            for i in tiles:
                if i in inlds:
                    if 'LA' not in st:
                        st['LA'] = free.pop(0)
                        e(f'v_lshl_add_u32 v{st["LA"]}, v0, 4, s70')
                    r = free.pop(0)
                    slot[i] = r
                    e(f'ds_read_b128 v[{r}:{r+3}], v{st["LA"]} offset:{1024*inlds.pop(i)}')
                    n += 1
            if n:
                e('s_waitcnt lgkmcnt(0)')

        def w_qk(G, part=None):
            if part != 1:
                fetch(range(4 * G, 4 * G + 4))
            K = [slot[4 * G + t] for t in range(4)]
            if G == 0 and part != 1:
                regs = [K[t] + d for t in range(4) for d in range(4)]
                regs.remove(K[2] + 1)
                order = [K[2] + 1] + regs
                for i in range(16):
                    sc[i] = order[i]
            u = sc[G]
            for d in ((0, 1, 2, 3) if part is None else (0, 1) if part == 0 else (2, 3)):
                for t in range(4):
                    if d == 0:
                        e(f'v_dot2_f32_bf16 v{K[t]}, v{K[t]}, v{Q}, 0')
                    else:
                        e(f'v_dot2c_f32_bf16 v{K[t]}, v{K[t]+d}, v{Q+d}')
            if part == 0:
                return
            T0, T1 = K[0] + 1, K[1] + 1
            e(f'v_add_f32_dpp v{T0}, v{K[0]}, v{K[0]} row_ror:8 row_mask:0xf bank_mask:0x3')
            e(f'v_add_f32_dpp v{T1}, v{K[1]}, v{K[1]} row_ror:8 row_mask:0xf bank_mask:0x3')
            e(f'v_add_f32_dpp v{T0}, v{K[2]}, v{K[2]} row_ror:8 row_mask:0xf bank_mask:0xc')
            e(f'v_add_f32_dpp v{T1}, v{K[3]}, v{K[3]} row_ror:8 row_mask:0xf bank_mask:0xc')
            e('s_nop 0')
            e(f'v_add_f32_dpp v{u}, v{T0}, v{T0} row_shl:4 row_mask:0xf bank_mask:0x5')
            e(f'v_add_f32_dpp v{u}, v{T1}, v{T1} row_shr:4 row_mask:0xf bank_mask:0xa')
            e('s_nop 1')
            e(f'v_add_f32_dpp v{u}, v{u}, v{u} quad_perm:[1,0,3,2] {DPPF}')
            e('s_nop 1')
            e(f'v_add_f32_dpp v{u}, v{u}, v{u} quad_perm:[2,3,0,1] {DPPF}')
            self.rnd(u, u)
            e(f'v_mul_f32 v{u}, s66, v{u}')
            self.rnd(u, u)
            if G > 0:
                free.extend(K)

        def w_sm1():
            st['T'] = [free.pop(0) for _ in range(5)]
            e(f'v_max3_f32 v2, v{sc[0]}, v{sc[1]}, v{sc[2]}')
            for i in range(3, 15, 2):
                e(f'v_max3_f32 v2, v2, v{sc[i]}, v{sc[i+1]}')
            e(f'v_max_f32 v2, v2, v{sc[15]}')
            e('v_max_f32 v2, 0xff7fffff, v2')
            e('s_nop 1')
            e(f'v_max_f32_dpp v2, v2, v2 row_ror:4 {DPPF}'); e('s_nop 1')
            e(f'v_max_f32_dpp v2, v2, v2 row_ror:8 {DPPF}')
            self.allreduce_rows('v_max_f32', 2, 3)
            e('s_mov_b32 s67, 0x3fb8aa3b')
            for i in range(16):
                e(f'v_sub_f32 v{sc[i]}, v{sc[i]}, v2')
            for i in range(16):
                e(f'v_mul_f32 v{sc[i]}, s67, v{sc[i]}')

        def w_sm2():
            t = st['T'][0]
            for i in range(16):
                e(f'v_exp_f32 v{sc[i]}, v{sc[i]}')
            e(f'v_add_f32 v3, v{sc[0]}, v{sc[1]}')
            for i in range(2, 16):
                e(f'v_add_f32 v3, v3, v{sc[i]}')
            e('s_nop 1')
            e(f'v_add_f32_dpp v3, v3, v3 row_ror:4 {DPPF}'); e('s_nop 1')
            e(f'v_add_f32_dpp v3, v3, v3 row_ror:8 {DPPF}')
            self.allreduce_rows('v_add_f32', 3, t)
            e('v_min_u32 v3, -2, v3')
            e('s_lshl_b32 s68, s34, 3'); e(f'v_mov_b32 v{t}, s68')
            e(f'ds_write_b64 v{t}, v[2:3] offset:{L_ML}')
            e(f'v_and_b32 v{t+1}, 15, v0'); e(f'v_lshrrev_b32 v{t+2}, 1, v{t+1}')
            e(f'v_and_b32 v{t+1}, 1, v0'); e(f'v_lshlrev_b32 v{t+1}, 4, v{t+1}')
            e(f'v_mov_b32 v{t+3}, 0xffff'); e(f'v_lshlrev_b32 v{t+1}, v{t+1}, v{t+3}')
            for j in range(4):
                e(f'v_cmp_eq_u32 vcc, {j}, v{t+2}'); e('s_nop 1'); e(f'v_cndmask_b32 v{4+j}, 0, v{t+1}, vcc')

        def w_sm3():
            a, b, t = st['T'][1], st['T'][2], st['T'][0]
            e(f'v_mov_b32 v{t}, 0')

            def issue():
                e(f'ds_read_b128 v[{a}:{a+3}], v{t} offset:{L_ML}')
                e(f'ds_read_b128 v[{b}:{b+3}], v{t} offset:{L_ML+16}')
            if 'k' not in self.abl:
                self.poll(issue, 's_waitcnt lgkmcnt(0)', lambda: self.sent_check([a + 1, a + 3, b + 1, b + 3], t + 1))
            M = t + 1
            e(f'v_max3_f32 v{M}, v{a}, v{a+2}, v{b}'); e(f'v_max_f32 v{M}, v{M}, v{b+2}')
            ms = [a, a + 2, b, b + 2, 2]
            for m in ms:
                e(f'v_sub_f32 v{m}, v{m}, v{M}')
            for m in ms:
                e(f'v_mul_f32 v{m}, s67, v{m}')
            for m in ms:
                e(f'v_exp_f32 v{m}, v{m}')
            e(f'v_mul_f32 v3, v{a}, v{a+1}')
            for m in ms[1:4]:
                e(f'v_fmac_f32 v3, v{m}, v{m+1}')
            e('v_rcp_f32 v3, v3'); e('s_nop 0')
            e('v_mul_f32 v2, v2, v3')
            for i in range(16):
                e(f'v_mul_f32 v{sc[i]}, v{sc[i]}, v2')
            for i in range(16):
                e(f'v_cvt_pk_bf16_f32 v{sc[i]}, v{sc[i]}, v{sc[i]}')
            e('s_nop 1')
            st['acc'] = st['T'][3]
            self.stamp(3)

        def pv_prep(i):
            k = i - 64
            A = st['T'][1 + (k & 1)]
            t = tmap(k)
            for j in range(4):
                e(f'v_and_b32_dpp v{A+j}, v{sc[t>>2]}, v{4+j} row_newbcast:{4*(t&3)} {DPPF}')

        def w_pv(i):
            k = i - 64
            A = st['T'][1 + (k & 1)]
            acc = st['acc']
            if i in inlds:
                fetch([t for t in range(i, i + 8) if t <= st['landed']])
            if k == 0:
                pv_prep(i)
            if i < 127:
                pv_prep(i + 1)
            V = slot[i]
            c = '0' if k == 0 else f'v[{acc}:{acc+3}]'
            st['pv_mfma'] = f'v_mfma_f32_16x16x32_bf16 v[{acc}:{acc+3}], v[{A}:{A+3}], v[{V}:{V+3}], {c}'
            e(st['pv_mfma'])
            free.append(V)

        work = [(-1, 0, w_q)]
        if self.QS:
            for G in range(16):
                if G < self.QS:
                    work += [(4 * G + 3, 30, (lambda G=G: w_qk(G)))]
                else:
                    work += [(4 * G + 3, 15, (lambda G=G: w_qk(G, 0))), (4 * G + 3, 15, (lambda G=G: w_qk(G, 1)))]
        else:
            work += [(4 * G + 3, 30, (lambda G=G: w_qk(G))) for G in range(16)]
        work += [(-1, 60, w_sm1), (-1, 70, w_sm2), (-1, 60, w_sm3)]
        work += [(i, self.PVC, (lambda i=i: w_pv(i))) for i in range(64, 128)]
        started = False
        JJ = self.JJ or self.QJ
        for j in range(128):
            landed = st.get('landed', -1)
            tolds = RG <= j < RG + self.NL
            st['landed'] = landed
            while not free and not tolds:
                started = True
                need, cost, fn = work.pop(0)
                assert need <= landed, (j, need)
                fn()
            D0 = self.D0 or D
            lo = D
            for j0, d0 in self.DS:
                if j >= j0:
                    lo = d0
            Dj = max(D2, lo) if (j < max(max(self.FU) + self.FX, max(self.FU2), max(self.WB), max(self.WB2), max([0] + [b for a, b in self.QL]))) else lo
            if j >= self.JE:
                Dj = lo = self.DE
            assert Dj <= D2 or j >= RG + self.NL
            if self.HP and self.HE and j == 128 - self.HE:
                st['hp'] = [r for r in free if r >= 96][:3]
                assert len(st['hp']) == 3
                for r in st['hp']:
                    free.remove(r)
                l = self.lab('hp')
                e(f's_cmp_lt_u32 s2, {self.HP}'); e(f's_cbranch_scc0 {l}')
                self.help_look(st['hp'][0]); e(f'{l}:')
            if self.FA and j == self.FA and not self.TB and not self.DB:
                set_boost(self.FU2[:5], self.FU2[5], 0, 's71', self.WB2)
                if any(a + D2 < self.FA for a, b in self.QL):
                    e('s_max_u32 s69, s69, s61')
            if self.TB and j in self.TB:
                e('s_memrealtime s[60:61]'); e('s_waitcnt lgkmcnt(0)'); e('s_sub_u32 s60, s60, s100')
                e(f's_cmp_gt_u32 s60, {int(self.TB[j] * 100)}'); e('s_cselect_b32 s69, 255, 0')
            waits = []
            xj = [] if 'j' in self.abl or not self.XC else [JJ - D2 - 2, self.QJ]
            if self.DB:
                xj = xj + [c - D2 for c in range(self.DB[0], self.DB[1], self.DB[2])]
            xj = xj + [a for a, b in self.QL]
            cnt = lambda d: d - 1 + sum(1 for x in xj if j - d < x <= j)
            if j >= D0:
                if Dj != lo:
                    waits.append(f's_cmpk_gt_u32 s69, {j}')
                if j >= Dj:
                    waits.append(f's_waitcnt vmcnt({cnt(Dj)})')
                if Dj != lo:
                    l = self.lab('d')
                    waits += [f's_cbranch_scc1 {l}', f's_waitcnt vmcnt({cnt(lo)})', f'{l}:']
            else:
                Dj = 999
            if j == JJ - D2 - 2 and 'j' not in self.abl:
                j_load('')
            if j == JJ and 'j' not in self.abl:
                j_check()
            if self.HP and j == self.HM[0]:
                e('s_and_b32 s62, s2, 7'); e('s_lshl_b32 s62, s62, 9'); e(f's_add_u32 s62, s62, {WS_PRG}')
                e('s_lshr_b32 s63, s2, 3'); e('s_lshl_b32 s63, s63, 2'); e('s_add_u32 s63, s63, s62')
            for on, M, hi, off in ((self.HP, self.HM, 128, 0),):
                if on and M[0] <= j < hi and (j - M[0]) % M[1] == 0:
                    if j >= 84 and 'mk' not in st:
                        st['mk'] = free.pop(0)
                    mk = st['mk'] if j >= 84 else 2
                    self.if_w((j - M[0]) // M[1] % 4, lambda: (e(f'v_mov_b32 v{mk}, {j if M[0] < 64 else j & 63}'), e('s_mov_b64 exec, 1'),
                                                             e(f'buffer_store_dword v{mk}, off, {WS}, s63 offset:{off}'), e('s_mov_b64 exec, -1')))
            if self.DB and j + D2 in range(self.DB[0], self.DB[1], self.DB[2]):
                if j >= 80 and 'lk' not in st:
                    st['lk'] = free.pop(0)
                a, d = (st['lk'], st['lk'] + 1) if j >= 80 else (2, 3)
                e(f'v_and_b32 v{a}, 31, v0'); e(f'v_lshlrev_b32 v{a}, 2, v{a}')
                e(f'buffer_load_dword v{d}, v{a}, {WS}, s62 offen sc1')
                st['look'] = (j, d)
            for a, b in self.QL:
                if j == a:
                    assert JJ < a and a + D2 < self.QJ
                    if a == min(x for x, y in self.QL):
                        e('s_mov_b32 s61, 0')
                    q_load()
            if j == self.QJ and 'j' not in self.abl:
                assert j + D2 + 1 < RG + self.NL <= self.JE
                q_load()
            if j % 8 == 0 and j:
                self.stamp(j // 8, 3)
            if j == 0:
                self.stamp(11)
            if j == D:
                self.stamp(12)
            if j == 2 * D:
                self.stamp(13)
            srd = SA if j < 64 else SB
            so = 's65'
            if tolds:
                if j == RG:
                    e(f's_mul_i32 s70, s34, {1024*self.NL}'); e(f's_add_u32 s70, s70, {L_EXT}')
                inlds[j] = j - RG
                e(f's_add_u32 m0, s70, {(j-RG)*1024}')
            if koff(j) or tolds:
                so = 's64'
                e(f's_xor_b32 s64, s65, {koff(j)}')
            for x in waits:
                e(x)
            if tolds:
                e(f'buffer_load_dwordx4 v1, {srd}, {so} offen {self.kvflags} lds')
            else:
                r = free.pop(0)
                slot[j] = r
                e(f'buffer_load_dwordx4 v[{r}:{r+3}], v1, {srd}, {so} offen {self.kvflags}')
            for a, b in self.QL:
                if j == a + D2:
                    l = self.lab('ql')
                    self.sent_check(range(4, 8), 2)
                    e(f's_cbranch_vccnz {l}'); e(f's_max_u32 s61, s61, {b}'); e('s_max_u32 s69, s69, s61'); e(f'{l}:')
            if self.DB and j in range(self.DB[0], self.DB[1], self.DB[2]):
                jl, d = st.pop('look')
                assert j - jl == D2
                e(f'v_add_u32 v{d}, 1, v{d}'); e(f'v_cmp_le_u32 vcc, {jl + self.DB[3] + 1}, v{d}')
                e('s_bcnt1_i32_b32 s71, vcc_lo'); e(f's_cmp_ge_u32 s71, {self.DB[4]}'); e('s_cselect_b32 s69, 255, 0')
            if j == D0 - 1:
                e('s_barrier')
                if self.SN:
                    late_setup()
            if j == D0 - 1 + self.SN:
                e('s_branch L_srest')
                self.L = []
                e('; ---- stream waves, main part'); e('L_srest:')
                if not self.SN:
                    late_setup()
            landed = max(landed, j - Dj)
            st['landed'] = landed
            budget = self.budget
            while started and work and work[0][0] <= landed and budget > 0:
                need, cost, fn = work.pop(0)
                fn()
                budget -= cost
        def drain(extra):
            for need, cost, fn in work:
                e(f's_waitcnt vmcnt({127-need+extra})')
                st['landed'] = need
                if need == 127:
                    self.ts(1)
                    self.stamp(16, 3)
                fn()
        assert not inlds and all(w[0] > 64 for w in work)
        gr = None
        if self.GP >= 3:
            gr = [free.pop(), free.pop()]

        def gdrain(extra):
            if self.GP == 4:
                l = self.lab('ng')
                n = self.gp_s(gr, l)
                drain(extra + n)
                e('s_branch L_drained')
                e(f'{l}:')
            drain(extra)

        def ending(x, tag):
            if self.HP and self.HE:
                e(f's_cmp_lt_u32 s2, {self.HP}'); e(f's_cbranch_scc0 L_nohelp{tag}')
                self.help_prep(*st['hp'])
                e(f's_waitcnt vmcnt({self.HE + x})')
                self.help_go(*st['hp'], f'L_drain{tag}', 's8', 's9', self.HM, self.HL, self.HG, 0)
                gdrain(self.HN + 1 + x)
                e('s_branch L_drained')
                e(f'L_nohelp{tag}:')
            if self.NS:
                e('s_cmp_eq_u32 s74, -1'); e(f's_cbranch_scc1 L_drain{tag}')
                self.ffn_slab(self.NPRE, self.NPRE + self.NS, 16, st['T'][4])
                drain(x + (0 if 'f' in self.abl else self.NS))
                e('s_branch L_drained')
            e(f'L_drain{tag}:')
            gdrain(x)
        if self.GP == 3:
            n = self.gp_s(gr, 'L_nogp3')
            ending(n, 'g')
            e('s_branch L_drained')
            e('L_nogp3:')
        ending(0, '')
        e('L_drained:')
        acc = st['acc']
        if self.OA:
            e('v_bfe_u32 v3, v0, 1, 3'); e('v_lshlrev_b32 v3, 6, v3'); e('v_and_b32 v2, 1, v0'); e('v_lshl_add_u32 v3, v2, 4, v3')
            e('v_bfe_u32 v2, v0, 4, 1'); e('v_lshl_add_u32 v2, v2, 3, v3')
            e('s_mov_b32 exec_hi, 0')
            e('s_nop 1')
            for r in range(4):
                e(f'ds_add_f32 v2, v{acc+r} offset:{L_OP + 32*(r>>1) + 4*(r&1)}')
        else:
            e('v_and_b32 v2, 15, v0'); e('v_lshlrev_b32 v2, 5, v2'); e('v_and_b32 v3, 16, v0'); e('v_add_u32 v2, v2, v3')
            e('s_lshl_b32 s68, s34, 9'); e('v_add_u32 v2, s68, v2')
            e('s_mov_b32 exec_hi, 0')
            e('s_nop 1')
            e(f'ds_write_b128 v2, v[{acc}:{acc+3}] offset:{L_OP}')
        e('s_mov_b32 exec_hi, -1')
        if self.GT == 63 or self.GTF == 63:
            self.if_w(0, lambda: (e('v_mov_b32 v3, 63'), e('s_mov_b64 exec, 1'), e(f'buffer_store_dword v3, off, {WS}, s63'), e('s_mov_b64 exec, -1')))
        e('v_lshlrev_b32 v1, 4, v0')
        e('s_waitcnt lgkmcnt(0)')
        self.stamp(4)
        self.ts(2)
        e('s_barrier')
        if self.GP == 1:
            self.gp()
        e('v_mov_b32 v2, 0'); e(f'ds_read_b32 v3, v2 offset:{L_RT}'); e('s_waitcnt lgkmcnt(0)'); e('v_readfirstlane_b32 s35, v3')
        if self.HP and not self.HE:
            e(f's_cmp_lt_u32 s2, {self.HP}'); e('s_cbranch_scc1 L_help')
        e('s_branch L_fin' if 't' in self.abl else 's_branch L_tail_s')
        if self.HP and not self.HE:
            e('L_help:')
            self.help_look(8); self.help_prep(8, 12, 16); e('s_waitcnt vmcnt(0)'); self.help_go(8, 12, 16, 'L_fin', 's8', 's9', self.HM, self.HL, self.HG, 0)
        if 's' in self.abl:
            self.L = [x for x in self.L if not x.startswith(('v_dot', 'v_add_f32_dpp', 'v_and_b32_dpp', 'v_mfma', 'v_cvt_pk', 'v_exp', 'v_mul_f32', 'v_sub_f32', 's_nop') + (('v_', 'ds_') if 'S' in self.abl else ()))]
        self.s_rest = self.L
        self.L = head

    def wg_xor(self, dst, wg, t):
        e = self.e
        pm = self.perm
        keep = 0x3ff & ~((1 << pm[0]) | (1 << pm[1]))
        groups = {}
        for b, c in enumerate(self.cols):
            for k in range(10):
                if (c & keep) >> k & 1:
                    groups.setdefault(k - b, []).append(b)
        for sh, bits in groups.items():
            if len(bits) == 8:
                e(f's_lshl_b32 {t}, {wg}, {8+sh}')
            else:
                e(f's_and_b32 {t}, {wg}, {sum(1 << b for b in bits)}'); e(f's_lshl_b32 {t}, {t}, {8+sh}')
            e(f's_xor_b32 {dst}, {dst}, {t}')

    def help_look(self, A, off=0):
        e = self.e
        e(f'v_lshlrev_b32 v{A}, 2, v0')
        e(f'buffer_load_dword v{A+1}, v{A}, {WS}, s62 offen offset:{off} sc1')

    def help_prep(self, A, B, C):
        e = self.e
        assert self.perm[:2] == (0, 1) and self.HN <= 4
        for k in range(self.HN):
            e(f'v_lshrrev_b32 v{C+k}, 3, v0'); e(f'v_sub_u32 v{C+k}, {63-8*k}, v{C+k}')
            e(f'v_and_b32 v{B+k}, 7, v0'); e(f'v_lshlrev_b32 v{B+k}, 7, v{B+k}')
            for b in range(6):
                e(f'v_bfe_u32 v{A+2}, v{C+k}, {b}, 1'); e(f'v_lshl_or_b32 v{B+k}, v{A+2}, {8+self.permV[b]}, v{B+k}')
        e('s_lshr_b32 s71, s2, 3')
        e(f'v_subrev_u32 v{A+3}, s71, v0'); e(f'v_and_b32 v{A+3}, 31, v{A+3}')

    def help_go(self, A, B, C, none, lo, hi, M, L, G, off):
        e = self.e
        m, c = A + 1, A + 2
        e(f'v_mov_b32 v{c}, v{m}'); e('s_nop 1'); e(f'v_permlane32_swap_b32 v{m}, v{c}')
        if M[0] < 64:
            e(f'v_add_u32 v{m}, 1, v{m}'); e(f'v_max_u32 v{m}, 64, v{m}'); e(f'v_subrev_u32 v{m}, 64, v{m}')
        else:
            e(f'v_add_u32 v{m}, 1, v{m}'); e(f'v_max_u32 v{m}, {(M[0] & 63) - M[1] + 1}, v{m}')
        e(f'v_cmp_eq_u32 vcc, -1, v{c}'); e(f'v_mov_b32 v{A}, 0xff'); e('s_nop 0'); e(f'v_cndmask_b32 v{m}, v{A}, v{m}, vcc')
        e(f'v_lshl_or_b32 v{m}, v{m}, 5, v{A+3}'); e('s_nop 1')
        for dpp in ['quad_perm:[1,0,3,2]', 'quad_perm:[2,3,0,1]', 'row_ror:4', 'row_ror:8']:
            e(f'v_min_u32_dpp v{m}, v{m}, v{m} {dpp} {DPPF}'); e('s_nop 1')
        e(f'v_readlane_b32 s76, v{m}, 0'); e(f'v_readlane_b32 s66, v{m}, 16'); e('s_min_u32 s76, s76, s66')
        e('s_lshr_b32 s66, s76, 5'); e(f's_cmp_lt_u32 s66, {64 - L - G}'); e(f's_cbranch_scc0 {none}')
        self.srd(SC, lo, hi, 1 << 28)
        e('s_lshr_b32 s64, s2, 3'); e('s_add_u32 s76, s76, s64'); e('s_and_b32 s76, s76, 31')
        e('s_lshl_b32 s67, s76, 2'); e('s_add_u32 s67, s67, s62')
        e('s_lshl_b32 s76, s76, 3'); e('s_and_b32 s64, s2, 7'); e('s_or_b32 s76, s76, s64')
        if self.perm[3] == self.perm[2] + 1:
            e(f's_lshl_b32 s64, s34, {8+self.perm[2]}')
        else:
            e('s_and_b32 s64, s34, 1'); e(f's_lshl_b32 s64, s64, {8+self.perm[2]}'); e('s_lshr_b32 s71, s34, 1'); e(f's_lshl_b32 s71, s71, {8+self.perm[3]}')
            e('s_or_b32 s64, s64, s71')
        self.wg_xor('s64', 's76', 's71')
        e('s_or_b32 s64, s64, 0xC0000'); e('s_lshl_b32 s76, s76, 20'); e('s_xor_b32 s76, s76, s64')
        e(f's_add_u32 s66, s66, {L - 1}')
        for k in range(self.HN - 1, -1, -1):
            e(f'v_xor_b32 v{B+k}, s76, v{B+k}')
            e(f'v_cmp_lt_u32 vcc, s66, v{C+k}'); e('s_or_b64 exec, vcc, 1')
            e(f'buffer_load_dword v{B+2+k if self.HN <= 2 else A}, v{B+k}, {SC}, 0 offen {self.hpflags}')
            e('s_mov_b64 exec, -1')
        e('s_mov_b64 exec, 1'); e(f'buffer_store_dword v1, off, {WS}, s67 offset:{off+128}'); e('s_mov_b64 exec, -1')

    def make_table(self):
        e = self.e
        l = self.lab('tab')
        e('v_cmp_eq_u32 vcc, 0, v25'); e(f's_cbranch_vccz {l}')
        self.poll(lambda: e(f'buffer_load_dword v25, v24, {SD}, 0 offen offset:128 sc1'), 's_waitcnt vmcnt(0)',
                  lambda: e('v_cmp_eq_u32 vcc, 0, v25'), sleep=self.flagsleep)
        e(f'{l}:')
        e('v_bfe_u32 v26, v25, 8, 3'); e('v_lshrrev_b32 v25, 16, v25'); e('s_nop 0')
        for dpp in ['quad_perm:[1,0,3,2]', 'quad_perm:[2,3,0,1]', 'row_ror:4', 'row_ror:8']:
            e(f'v_add_u32_dpp v26, v26, v26 {dpp} {DPPF}'); e('s_nop 1')
        e('v_readlane_b32 s66, v26, 0'); e('v_readlane_b32 s71, v26, 16'); e('s_add_u32 s66, s66, s71'); e('s_cmp_gt_u32 s66, 64'); e('s_cselect_b32 s66, 1, 0')
        if self.pol is not None:
            e(f's_mov_b32 s66, {self.pol}')
        e('v_cmp_ne_u32 vcc, s66, v25'); e('s_and_b32 s71, vcc_lo, 0xff'); e('s_bcnt0_i32_b32 s66, s71'); e('s_sub_u32 s66, s66, 24')
        e('v_mbcnt_lo_u32_b32 v24, s71, 0'); e('v_sub_u32 v25, v0, v24'); e('v_add_u32 v24, s66, v24'); e('v_cndmask_b32 v24, v25, v24, vcc')
        e('v_bfe_u32 v25, v24, 1, 2'); e('v_and_b32 v26, 1, v24'); e('v_lshl_or_b32 v25, v26, 2, v25')
        e('v_lshlrev_b32 v25, v2, v25'); e('s_nop 1')
        for dpp in ['quad_perm:[1,0,3,2]', 'quad_perm:[2,3,0,1]', 'row_shl:4']:
            e(f'v_or_b32_dpp v25, v25, v25 {dpp} {DPPF}'); e('s_nop 1')
        e('v_readfirstlane_b32 s35, v25')
        e('s_mov_b64 exec, 1'); e(f'ds_write_b32 v2, v25 offset:{L_RT}'); e('s_mov_b64 exec, -1')

    def gate(self, thr, r):
        e = self.e
        lw, ld = self.lab('gw'), self.lab('gd')
        e(f'v_mov_b32 v{r+2}, 0')
        e('s_cmp_eq_u32 s34, 0'); e(f's_cbranch_scc0 {lw}')
        e('s_and_b32 s71, s2, 7'); e('s_lshl_b32 s71, s71, 9'); e(f's_add_u32 s71, s71, {WS_PRG}')
        e(f'v_and_b32 v{r}, 31, v0'); e(f'v_lshlrev_b32 v{r}, 2, v{r}')
        lp, lx = self.lab('gp'), self.lab('gx')
        e('s_mov_b32 s75, 0')
        e(f'{lp}:')
        e(f'buffer_load_dword v{r+1}, v{r}, {WS}, s71 offen sc1')
        e('s_waitcnt vmcnt(0)')
        e(f'v_add_u32 v{r+1}, 1, v{r+1}'); e(f'v_cmp_gt_u32 vcc, {thr + 1}, v{r+1}')
        e(f's_cbranch_vccz {lx}')
        e(f's_sleep {self.GS}')
        e('s_add_u32 s75, s75, 1'); e(f's_cmp_lt_u32 s75, {self.GC}'); e(f's_cbranch_scc1 {lp}')
        e(f'{lx}:')
        e(f'v_mov_b32 v{r+1}, 1'); e(f'ds_write_b32 v{r+2}, v{r+1} offset:{L_GATE}')
        e(f's_branch {ld}')
        e(f'{lw}:')
        self.poll(lambda: e(f'ds_read_b32 v{r+1}, v{r+2} offset:{L_GATE}'), 's_waitcnt lgkmcnt(0)', lambda: e(f'v_cmp_eq_u32 vcc, 0, v{r+1}'), sleep=1)
        e(f'{ld}:')

    def gp(self):
        e = self.e
        r = 8
        e(f's_sub_u32 s67, s2, {self.G0}'); e('s_cmp_lt_u32 s67, 128'); e('s_cbranch_scc0 L_nogp')
        if self.GT:
            self.gate(self.GT, 28)
        e('s_and_b32 s66, s2, 7'); e('s_min_u32 s64, s66, 3'); e('s_mul_i32 s71, s66, 5'); e('s_add_u32 s64, s64, s71')
        e('s_cmp_lt_u32 s66, 3'); e('s_cselect_b32 s66, 5, 4')
        e(f'v_and_b32 v{r}, 7, v0'); e(f'v_min_u32 v{r}, s66, v{r}'); e(f'v_add_u32 v{r}, s64, v{r}')
        e('s_and_b32 s64, s67, 0xf8'); e('s_lshl_b32 s64, s64, 2'); e('s_lshl_b32 s66, s34, 3'); e('s_add_u32 s64, s64, s66')
        e(f'v_lshrrev_b32 v{r+1}, 3, v0'); e(f'v_add_u32 v{r+1}, s64, v{r+1}'); e(f'v_mul_u32_u24 v{r+1}, 2752, v{r+1}')
        e(f'v_lshl_add_u32 v{r}, v{r}, 6, v{r+1}')
        if self.LD and self.LDP == 1:
            self.gp_down(r + 4)
        e(f'global_load_dword v{r+2}, v{r}, s[16:17]'); e(f'global_load_dword v{r+3}, v{r}, s[18:19]')
        if self.GB:
            e(f's_mov_b32 s64, {256*2752}'); e('s_bitcmp1_b32 s67, 6'); e(f's_cselect_b32 s64, {(-256*2752) & 0xffffffff}, s64')
            e(f'v_add_u32 v{r}, s64, v{r}')
            e(f'global_load_dword v{r+2}, v{r}, s[16:17]'); e(f'global_load_dword v{r+3}, v{r}, s[18:19]')
        if self.LD and self.LDP == 2:
            self.gp_down(r + 4)
        self.fin()
        e('L_nogp:')

    def gp_ticket(self):
        e = self.e
        r = 8
        n = self.TKN
        e(f's_cmp_lt_u32 s2, {self.TKW}'); e('s_cbranch_scc0 L_nogp')
        e('s_and_b32 s66, s2, 7'); e('s_min_u32 s64, s66, 3'); e('s_mul_i32 s71, s66, 5'); e('s_add_u32 s64, s64, s71')
        e('s_cmp_lt_u32 s66, 3'); e('s_cselect_b32 s66, 5, 4')
        e(f'v_and_b32 v{r}, 7, v0'); e(f'v_min_u32 v{r}, s66, v{r}'); e(f'v_add_u32 v{r}, s64, v{r}')
        e(f'v_lshrrev_b32 v{r+1}, 3, v0')
        e('s_waitcnt vmcnt(1)')
        e('v_readfirstlane_b32 s67, v28')
        e(f's_sub_u32 s67, s67, {self.TK0 - 1}'); e(f's_cmp_lt_u32 s67, {n}'); e('s_cbranch_scc0 L_fin')
        e(f's_mul_i32 s71, s67, {512 // n}')
        e(f'v_add_u32 v{r+1}, s71, v{r+1}'); e(f'v_mul_u32_u24 v{r+1}, 2752, v{r+1}')
        e(f'v_lshl_add_u32 v{r}, v{r}, 6, v{r+1}')
        def down():
            k = 1536 // n
            e('s_add_u32 s66, s66, 1'); e('s_lshl_b32 s66, s66, 8'); e('s_sub_u32 s66, s66, 1')
            e(f's_mul_i32 s71, s67, {k}')
            e(f'v_min_u32 v{r+4}, {k-1}, v0'); e(f'v_add_u32 v{r+4}, s71, v{r+4}'); e(f'v_min_u32 v{r+4}, s66, v{r+4}')
            e('s_lshl_b32 s64, s64, 15'); e(f'v_lshl_add_u32 v{r+4}, v{r+4}, 7, s64')
            e(f'global_load_dword v{r+5}, v{r+4}, s[20:21]')
        if self.LD and self.LDP == 1:
            down()
        for k in range(512 // n // 8):
            if k:
                e(f'v_add_u32 v{r}, {8*2752}, v{r}')
            e(f'global_load_dword v{r+2}, v{r}, s[16:17]'); e(f'global_load_dword v{r+3}, v{r}, s[18:19]')
        if self.LD and self.LDP == 2:
            down()
        self.fin()
        e('L_nogp:')

    def gp_s(self, gr, skip):
        e = self.e
        r, d = gr
        e(f's_sub_u32 s67, s2, {self.G0}'); e('s_cmp_lt_u32 s67, 128'); e(f's_cbranch_scc0 {skip}')
        e('s_and_b32 s66, s2, 7'); e('s_min_u32 s64, s66, 3'); e('s_mul_i32 s71, s66, 5'); e('s_add_u32 s64, s64, s71')
        e('s_cmp_lt_u32 s66, 3'); e('s_cselect_b32 s66, 5, 4')
        e(f'v_and_b32 v{r}, 7, v0'); e(f'v_min_u32 v{r}, s66, v{r}'); e(f'v_add_u32 v{r}, s64, v{r}')
        e('s_and_b32 s64, s67, 0xf8'); e('s_lshl_b32 s64, s64, 2'); e('s_lshl_b32 s66, s34, 3'); e('s_add_u32 s64, s64, s66')
        e(f'v_lshrrev_b32 v{r+1}, 3, v0'); e(f'v_add_u32 v{r+1}, s64, v{r+1}'); e(f'v_mul_u32_u24 v{r+1}, 2752, v{r+1}')
        e(f'v_lshl_add_u32 v{r}, v{r}, 6, v{r+1}')
        n = 2
        if self.LD and self.LDP == 1:
            self.gp_down(r + 2, d + 2); n = 3
        e(f'global_load_dword v{d}, v{r}, s[16:17]'); e(f'global_load_dword v{d+1}, v{r}, s[18:19]')
        if self.LD and self.LDP == 2:
            self.gp_down(r + 2, d + 2); n = 3
        return n

    def gp_down(self, r, d=None):
        e = self.e
        e('s_and_b32 s66, s2, 7'); e('s_min_u32 s70, s66, 3'); e('s_mul_i32 s71, s66, 5'); e('s_add_u32 s70, s70, s71')
        e('s_cmp_lt_u32 s66, 3'); e('s_cselect_b32 s66, 6, 5'); e('s_lshl_b32 s66, s66, 8'); e('s_sub_u32 s66, s66, 1')
        e('s_lshr_b32 s71, s67, 3'); e('s_lshl_b32 s71, s71, 2'); e('s_add_u32 s71, s71, s34'); e('s_mul_i32 s71, s71, 24')
        e(f'v_min_u32 v{r}, 23, v0'); e(f'v_add_u32 v{r}, s71, v{r}'); e(f'v_min_u32 v{r}, s66, v{r}')
        e('s_lshl_b32 s70, s70, 15'); e(f'v_lshl_add_u32 v{r}, v{r}, 7, s70')
        e(f'global_load_dword v{r+1 if d is None else d}, v{r}, s[20:21]')

    def common(self):
        e = self.e
        if self.diag:
            e('s_mov_b32 s80, s100')
        e('s_lshr_b32 s32, s2, 5'); e('s_and_b32 s33, s2, 31')
        e('s_and_b32 s67, s2, 7'); e('s_lshr_b32 s68, s2, 3'); e('s_sub_u32 s68, s68, 26')
        e('s_min_u32 s74, s67, 3'); e('s_mul_i32 s66, s67, 5'); e('s_add_u32 s74, s74, s66'); e('s_add_u32 s74, s74, s68')
        e('s_cmp_lt_u32 s67, 3'); e('s_cselect_b32 s66, 6, 5'); e('s_cmp_lt_u32 s68, s66'); e('s_cselect_b32 s74, s74, -1')
        e('s_cmp_lt_u32 s2, 48'); e('s_cselect_b32 s66, 2, 3'); e('s_cselect_b32 s72, 14+26, 42+26')
        e('s_cmp_lt_u32 s2, 16'); e('s_cselect_b32 s66, 1, s66'); e('s_cselect_b32 s72, 26, s72')
        e('s_lshl_b32 s66, s67, s66'); e('s_add_u32 s72, s72, s66'); e('s_add_u32 s72, s72, s68')
        self.srd(WS, 's30', 's31', WS_STAMP + 0x40000 if self.diag else WS_END)
        self.srd(SD, 's28', 's29', 256)

    def phase0_addr(self):
        e = self.e
        e('s_and_b32 s67, s2, 7'); e('s_lshr_b32 s68, s2, 3')
        e('v_and_b32 v38, 7, v0'); e('v_lshrrev_b32 v37, 3, v0')
        e('s_cmp_eq_u32 s34, 0'); e('s_cbranch_scc0 L_p0a')
        e('s_mov_b32 s70, 6'); e('s_lshl_b32 s67, s67, 1'); e('s_add_u32 s66, s67, 14')
        e('v_min_u32 v38, %d, v38' % (1 if 'l' in self.abl else 5)); e('v_cmp_lt_u32 vcc, 1, v38'); e('v_add_u32 v36, s66, v38'); e('s_nop 0'); e('v_cndmask_b32 v38, v38, v36, vcc')
        e('s_branch L_p0b')
        e('L_p0a:')
        e('s_lshl_b32 s67, s67, 3'); e('s_lshl_b32 s65, s2, 3'); e('s_and_b32 s65, s65, 0xff'); e('s_lshr_b32 s66, s2, 5'); e('s_or_b32 s65, s65, s66')
        e('s_cmp_eq_u32 s34, 2'); e('s_cselect_b32 s70, 1, 8'); e('s_cselect_b32 s68, s65, s68'); e('s_cselect_b32 s67, 0, s67')
        e('L_p0b:')
        e('v_lshl_add_u32 v37, s68, 4, v37'); e('v_mul_u32_u24 v37, s70, v37')
        e('v_lshl_add_u32 v38, v37, 3, v38'); e('v_add_lshl_u32 v38, v38, s67, 7')
        e('s_lshl_b32 s70, s70, 13'); e('v_add_u32 v39, s70, v38')

    def phase0_issue(self):
        e = self.e
        l = self.lab('p0')
        e('s_cmp_eq_u32 s34, 3'); e(f's_cbranch_scc1 {l}')
        e('s_cmp_eq_u32 s34, 0'); e('s_cselect_b32 s62, s24, s10'); e('s_cselect_b32 s63, s25, s11')
        e('s_cmp_eq_u32 s34, 2'); e('s_cselect_b32 s62, s12, s62'); e('s_cselect_b32 s63, s13, s63')
        e('global_load_dword v12, v38, s[62:63]'); e('global_load_dword v13, v39, s[62:63]')
        e(f'{l}:')

    def phase0_ffn(self):
        e = self.e
        x, y = 's67', 's68'
        e(f's_and_b32 {x}, s2, 7'); e(f's_lshr_b32 {y}, s2, 3')
        e(f's_min_u32 s64, {x}, 3'); e(f's_mul_i32 s65, {x}, 5'); e('s_add_u32 s64, s64, s65')
        e(f's_cmp_lt_u32 {x}, 3'); e('s_cselect_b32 s65, 6, 5')
        if 'd' in self.P3 and not self.LD:
            e(f's_mul_i32 s66, {y}, s65'); e('s_lshl_b32 s66, s66, 10'); e('s_lshl_b32 s69, s64, 15'); e('s_add_u32 s66, s66, s69')
            e('s_lshl_b32 s69, s65, 3'); e('s_sub_u32 s69, s69, 1'); e('v_min_u32 v16, s69, v0'); e('v_lshl_add_u32 v16, v16, 7, s66')
            e('global_load_dword v33, v16, s[20:21]')
        if 'f' in self.P3:
            n = int(self.P3[-1])
            e('s_sub_u32 s65, s65, 1'); e('v_and_b32 v16, 7, v0'); e('v_min_u32 v16, s65, v16'); e('v_add_u32 v16, s64, v16')
            e('v_lshrrev_b32 v17, 3, v0'); e(f'v_min_u32 v17, {n-1}, v17')
            e(f's_and_b32 s66, {y}, 7'); e(f's_mul_i32 s66, s66, {n}'); e(f's_lshr_b32 s69, {y}, 3'); e('s_lshl_b32 s69, s69, 7'); e('s_add_u32 s66, s66, s69')
            e('v_add_u32 v17, s66, v17'); e('v_mul_u32_u24 v17, 2752, v17'); e('v_lshl_add_u32 v16, v16, 6, v17')
            e('global_load_dword v34, v16, s[16:17]'); e('global_load_dword v35, v16, s[18:19]')

    def pclear(self):
        e = self.e
        assert WS_MOD == 0
        e('v_mov_b32 v4, -1'); e('v_mov_b32 v5, -1'); e('v_mov_b32 v6, -1'); e('v_mov_b32 v7, -1')
        e('s_and_b32 s66, s2, 7'); e('s_lshl_b32 s66, s66, 11'); e('s_and_b32 s65, s2, 8'); e('s_lshl_b32 s65, s65, 7'); e('s_add_u32 s66, s66, s65')
        e('v_add_u32 v8, s66, v1')
        e('global_store_dwordx4 v8, v[4:7], s[30:31] sc1')
        if self.PC:
            e('s_mov_b32 s77, 1')
            return
        e('s_lshl_b32 s66, s2, 2'); e('v_mov_b32 v3, s66')
        e('s_waitcnt vmcnt(0)')
        e('s_mov_b64 exec, 1')
        if 'Y' not in self.abl:
            e('global_store_dword v3, v4, s[28:29] sc1')
        e('s_mov_b64 exec, -1')
        self.stamp(10)

    def janitor(self):
        e = self.e
        e('v_mov_b32 v4, -1'); e('v_mov_b32 v5, -1'); e('v_mov_b32 v6, -1'); e('v_mov_b32 v7, -1')
        e('s_lshl_b32 s67, s64, 2'); e('s_add_u32 s67, s67, s34'); e('s_cmp_lt_u32 s67, 32'); e(f's_cselect_b32 s66, 0, {GAP}')
        e('s_mul_i32 s65, s67, 3072'); e('s_add_u32 s65, s65, s66'); e(f's_add_u32 s65, s65, {WS_BLK}')
        e('v_add_u32 v8, s65, v1')
        if 'c' not in self.abl:
            for k in range(3):
                e(f'global_store_dwordx4 v8, v[4:7], s[30:31] offset:{k*1024} {self.cflags}')
        e('s_and_b32 s66, s67, 64'); e('s_add_u32 s67, s67, s66'); e('s_lshl_b32 s67, s67, 7'); e(f's_add_u32 s67, s67, {WS_RACE}')
        e('v_and_b32 v8, 8, v0'); e('v_lshlrev_b32 v8, 10, v8'); e('v_and_b32 v10, 0x70, v1'); e('v_add3_u32 v8, v8, v10, s67')
        e('s_mov_b64 exec, 0xffff')
        e(f'global_store_dwordx4 v8, v[4:7], s[30:31] {self.cflags}')
        e('s_mov_b64 exec, 1')
        e(f's_load_dword s68, s[30:31], {WS_RACE - 0x100000:#x}')
        e('s_and_b32 s65, s34, 1'); e('s_lshl_b32 s66, s65, 13'); e('s_xor_b32 s67, s67, s66'); e('s_xor_b32 s66, s67, 0x2000')
        e('s_waitcnt vmcnt(0) lgkmcnt(0)')
        if self.P0:
            e('s_mov_b64 exec, -1'); self.phase0_issue(); e('s_mov_b64 exec, 1')
        for a, n in (('s67', 's70'), ('s66', 's71')):
            l = self.lab('race')
            e(f's_mov_b32 {n}, 0')
            e(f's_load_dword s68, s[30:31], {a}')
            e(f'{l}:')
            e('s_getreg_b32 s69, hwreg(HW_REG_IB_STS, 8, 4)'); e(f's_add_u32 {n}, {n}, 1'); e('s_cmp_eq_u32 s69, 0'); e(f's_cbranch_scc0 {l}')
            e('s_waitcnt lgkmcnt(0)')
        if self.diag == 1:
            e('s_add_u32 s91, s70, s100'); e('s_add_u32 s92, s71, s100')
        e('s_cmp_lt_u32 s71, s70'); e('s_cselect_b32 s70, 1, 0'); e('s_xor_b32 s70, s70, s65')
        e('s_getreg_b32 s69, hwreg(HW_REG_XCC_ID, 2, 1)'); e('s_xor_b32 s70, s70, s69'); e('s_lshl_b32 s69, s69, 14')
        e('s_lshl_b32 s70, s70, 8'); e('s_add_u32 s70, s70, s69'); e('s_add_u32 s70, s70, 1'); e('v_mov_b32 v9, s70')
        e('s_lshl_b32 s65, s64, 2'); e('v_mov_b32 v8, s65')
        e(f'ds_add_rtn_u32 v11, v2, v9 offset:{L_CNT}')
        e('s_waitcnt lgkmcnt(0)')
        e('v_add_u32 v11, v11, v9'); e('v_and_b32 v10, 0xff, v11'); e('v_cmp_eq_u32 vcc, 4, v10')
        l = self.lab('j')
        e(f's_cbranch_vccz {l}')
        if 'y' not in self.abl:
            e('global_store_dword v8, v11, s[28:29] offset:128 sc1')
        e(f'{l}:')
        e('s_mov_b64 exec, -1')
        self.stamp(10)

    def if_w(self, w, fn, other=None):
        e = self.e
        l = self.lab('w')
        e(f's_cmp_eq_u32 s34, {w}'); e(f's_cbranch_scc0 {l}')
        fn()
        if other:
            l2 = self.lab('w')
            e(f's_branch {l2}'); e(f'{l}:'); other(); e(f'{l2}:')
        else:
            e(f'{l}:')

    def h_wave(self):
        e = self.e
        e('; ---- helper waves: prefetch addresses, LDS init'); e('L_helper:')
        if 'H' in self.abl:
            e('s_endpgm')
        e(f's_setprio {self.hprio}')
        e('v_lshlrev_b32 v2, 2, v0')
        e('s_cmp_eq_u32 s3, 7'); e('s_cbranch_scc0 L_nopf')
        if self.prefetch:
            e('s_getpc_b64 s[60:61]')
            e('L_pc:')
            e('s_lshr_b32 s66, s2, 3'); e('s_lshl_b32 s66, s66, 10')
            e('v_add_u32 v10, s66, v1')
            e('v_min_u32 v10, L_code_end-L_pc-16, v10')
            e('global_load_dwordx4 v[12:15], v10, s[60:61]')
        e('v_sub_u32 v3, v0, 16'.replace('v_sub_u32 v3, v0, 16', 'v_subrev_u32 v3, 16, v0')); e('v_ashrrev_i32 v3, 31, v3')
        e(f'ds_write_b32 v2, v3 offset:{L_ML}')
        if self.OA:
            e('v_mov_b32 v4, 0'); e('v_mov_b32 v5, 0'); e('v_lshlrev_b32 v6, 3, v0')
            e(f'ds_write_b64 v6, v[4:5] offset:{L_OP}')
        e('L_nopf:')
        if self.P0:
            self.phase0_addr()
        e('s_sub_u32 s64, s2, 112'); e(f's_cmp_lt_u32 s64, {self.JC}')
        e('s_waitcnt lgkmcnt(0)')
        e('s_barrier')
        if 'J' not in self.abl:
            e('s_cbranch_scc1 L_jan')
        if self.P0:
            self.phase0_issue()
        e('L_nop0:')
        if self.PC:
            e('s_mov_b32 s77, 0')
        e('s_cmp_eq_u32 s34, 3'); e('s_cselect_b32 s64, 16, 0'); e('s_cmp_lt_u32 s2, s64'); e('s_cbranch_scc0 L_nopc')
        self.pclear()
        e('L_nopc:')
        self.if_w(3, lambda: self.phase0_ffn() if self.P3 else None)
        self.stamp(11)
        self.common()
        e('v_mov_b32 v9, 1')
        if 'q' in self.abl:
            e('s_branch L_norole')
        e('s_cmp_lt_u32 s2, 112'); e('s_cbranch_scc0 L_norole')
        self.gemm_role()
        e('s_branch L_waitq')
        e('L_jan:')
        self.janitor()
        e('s_branch L_nop0')
        e('L_norole:')
        e('s_cmp_eq_u32 s74, -1'); e('s_cbranch_scc1 L_waitq')
        self.ffn_slab(0, self.NPRE)
        e('; ---- w_down and wo -> LDS -> transposed MFMA operands'); e('L_waitq:')
        self.stamp(1)

        self.stamp(2)
        self.wo_load()
        if 't' not in self.abl:
            self.make_table()
        if 't' not in self.abl:
            self.red_preload()
        self.stamp(3)

        e('v_lshlrev_b32 v10, 3, v0')
        e('s_lshl_b32 s64, s34, 8'); e(f's_add_u32 s64, s64, {L_OB}')
        e('s_lshr_b32 s66, s68, 1'); e('v_xor_b32 v12, s66, v0'); e('v_mov_b32 v14, 0')
        for i, pbit in enumerate(self.wperm):
            e(f'v_bfe_u32 v11, v12, {pbit-1}, 1'); e(f'v_lshl_or_b32 v14, v11, {i}, v14')
        e('v_and_b32 v11, 0x38, v14'); e('v_and_b32 v12, 1, v14'); e('v_lshl_add_u32 v11, v12, 2, v11')
        e('v_bfe_u32 v12, v14, 1, 2'); e('v_add_u32 v11, v11, v12'); e('v_lshl_add_u32 v11, v11, 2, s64')
        e('v_and_b32 v14, 1, v0'); e('v_and_b32 v12, 48, v0'); e('v_lshlrev_b32 v12, 1, v12'); e('v_lshl_add_u32 v12, v14, 4, v12')
        e('v_add_u32 v12, s64, v12')
        if self.OA:
            assert self.wperm == (1, 2, 3, 4, 5, 6) and not any(self.wcw) and not any(self.wcols)
            e('v_and_b32 v12, 48, v0'); e('v_lshlrev_b32 v12, 2, v12'); e('v_lshl_add_u32 v12, v14, 5, v12')
        e('v_mul_u32_u24 v15, 0xaaaa, v14'); e('v_add_u32 v15, 0x4444, v15')
        for i in range(64, 96):
            e(f'v_mov_b32 v{i}, 0')
        e('s_lshl_b32 s64, s34, 3'); e('s_lshr_b32 s64, s35, s64')
        e('v_bfe_u32 v13, v0, 3, 1'); e('v_lshlrev_b32 v13, 2, v13'); e('v_bfe_u32 v13, s64, v13, 3')
        e('v_and_b32 v14, 0x70, v1'); e('v_lshl_add_u32 v13, v13, 12, v14')
        if self.SK:
            e('s_lshl_b32 s64, s34, 2'); e('s_add_u32 s64, s64, s33'); e('v_bfe_u32 v14, v0, 3, 1'); e('v_lshl_add_u32 v14, v14, 1, s64')
            e('v_and_b32 v14, 31, v14'); e('v_lshl_add_u32 v13, v14, 7, v13')
            e('s_lshl_b32 s69, s32, 15'); e(f's_add_u32 s69, s69, {WS_P1}')
        else:
            e('s_lshl_b32 s69, s32, 15')
            e('s_lshl_b32 s64, s33, 7'); e('s_add_u32 s69, s69, s64'); e(f's_add_u32 s69, s69, {WS_P1}')
        e('s_waitcnt vmcnt(0) lgkmcnt(0)')
        self.stamp(4)
        e('s_barrier')

    def ffn_slab(self, a, b, FD=None, v=16):
        e = self.e
        if a == b:
            return
        FD = FD or self.FD
        self.srd(SA, 's16', 's17', 512 * 2752)
        self.srd(SE, 's18', 's19', 512 * 2752)
        e(f'v_lshrrev_b32 v{v}, 2, v0'); e(f'v_mul_u32_u24 v{v}, 2752, v{v}')
        e(f'v_and_b32 v{v+1}, 3, v0'); e(f'v_lshrrev_b32 v{v+2}, 5, v0'); e(f'v_xor_b32 v{v+1}, v{v+1}, v{v+2}')
        e(f'v_xor_b32 v{v+2}, 2, v{v+1}')
        e(f'v_lshl_add_u32 v{v+1}, v{v+1}, 4, v{v}'); e(f'v_lshl_add_u32 v{v+2}, v{v+2}, 4, v{v}')
        e(f's_mul_i32 s64, s34, {128*2752}'); e('s_lshl_b32 s65, s74, 6'); e('s_add_u32 s64, s64, s65')
        e('s_lshl_b32 s65, s34, 13')
        if 'F' in self.abl:
            e('v_mov_b32 v17, v1'); e('v_mov_b32 v18, v1'); e('s_lshl_b32 s64, s74, 15'); e('s_add_u32 s64, s64, s65')
        for i in range(a, b):
            if 'f' in self.abl:
                continue
            t, m = i >> 1, i & 1
            if i - a >= FD:
                e(f's_waitcnt vmcnt({FD-1})')
            e(f's_add_u32 m0, s65, {L_BIG + m*32768 + t*1024}')
            e(f's_add_u32 s66, s64, {t*1024 if "F" in self.abl else t*16*2752}')
            e(f'buffer_load_dwordx4 v{v+1+m}, {SE if m else SA}, s66 offen {self.fflags} lds')

    def colmap(self):
        e = self.e
        e('v_and_b32 v5, 15, v0'); e('v_and_b32 v6, 16, v0'); e('v_lshl_add_u32 v5, v6, 1, v5')
        e('v_and_b32 v6, 32, v0'); e('v_lshrrev_b32 v6, 1, v6'); e('v_add_u32 v5, v5, v6')
        e('v_lshlrev_b32 v5, 1, v5'); e('v_and_b32 v6, 0x7c, v5')

    def red_preload(self):
        e = self.e
        l = self.lab('rp')
        e('s_sub_u32 s64, s2, 144'); e('s_cmp_lt_u32 s64, 64'); e(f's_cbranch_scc0 {l}')
        e('s_cmp_eq_u32 s34, 0'); e(f's_cbranch_scc0 {l}')
        self.srd(SC, 's4', 's5', 8192)
        self.colmap()
        e('s_lshl_b32 s65, s64, 7'); e('s_and_b32 s66, s65, 0x380')
        e('s_lshr_b32 s64, s64, 3'); e(f's_mul_i32 s64, s64, {BP}'); e('s_add_u32 s64, s64, s66'); e(f's_add_u32 s64, s64, {WS_BLK + 8192}')
        e(f'buffer_load_ushort v18, v5, {SC}, s65 offen')

        def gissue():
            for i, off in enumerate((0, 3072)):
                e(f'buffer_load_dword v{19+i}, v6, {WS}, s64 offen offset:{off} sc1')
        self.poll(gissue, 's_waitcnt vmcnt(0)', lambda: self.sent_check([19, 20], 16), sleep=self.flagsleep)
        e('v_and_b32 v16, 1, v0'); e('v_lshlrev_b32 v16, 4, v16'); e('v_xor_b32 v16, 16, v16')
        e('v_lshlrev_b32 v18, 16, v18')
        for i in (19, 20):
            e(f'v_lshlrev_b32 v{i}, v16, v{i}'); e(f'v_and_b32 v{i}, 0xffff0000, v{i}')
        for k in range(3):
            e(f'ds_write_b32 v2, v{18+k} offset:{L_BIG + 256*k}')
        e(f'{l}:')

    def wo_load(self):
        e = self.e
        HD0, HD = self.HD, max(self.HD, self.HDF)
        e('s_cmp_eq_u32 s74, -1'); e('s_cselect_b64 vcc, 0, -1'); e('s_cmp_lt_u32 s2, 112'); e('s_cselect_b64 vcc, -1, vcc')
        self.srd(SB, 's12', 's13', 4096 * 1024)
        e('v_lshrrev_b32 v18, 4, v0'); e('v_and_b32 v16, 15, v0'); e('v_xor_b32 v16, v16, v18'); e('v_xor_b32 v17, 4, v16')
        e('v_lshlrev_b32 v19, 10, v18'); e('v_lshl_add_u32 v22, v16, 4, v19'); e('v_lshl_add_u32 v23, v17, 4, v19')
        wp = self.wperm
        e('v_and_b32 v19, 1, v18'); e('v_lshlrev_b32 v19, 10, v19'); e('v_lshrrev_b32 v18, 1, v18'); e(f'v_lshl_add_u32 v18, v18, {10+wp[0]}, v19')
        e('v_lshl_add_u32 v16, v16, 4, v18'); e('v_lshl_add_u32 v17, v17, 4, v18')
        e('v_lshrrev_b32 v18, 4, v0')
        e('v_bfe_u32 v19, v0, 2, 2')
        e('v_and_b32 v20, 2, v0'); e('v_lshlrev_b32 v20, 2, v20')
        e('v_xor_b32 v20, v20, v19')
        e('v_and_b32 v21, 1, v18'); e('v_lshlrev_b32 v21, 2, v21'); e('v_xor_b32 v20, v20, v21')
        e('v_lshlrev_b32 v20, 4, v20')
        e('v_lshl_add_u32 v20, v18, 10, v20'); e('v_lshl_add_u32 v20, v19, 8, v20')
        e('v_and_b32 v21, 1, v0'); e('v_lshl_add_u32 v20, v21, 3, v20')
        e('s_lshl_b32 s65, s34, 13'); e(f's_add_u32 s65, s65, {L_BIG + 4096}')
        assert self.NPRE + self.NS <= 8
        e('v_add_u32 v40, s65, v20')
        for T in range(1, 8):
            e(f'v_xor_b32 v{40+T}, {16*T}, v40')

        def stage(srd, sbase, nk, dst, va, wp, HD0, HD):
            n = 8 * nk

            def tr(hh):
                j, t = hh >> 1, hh & 1
                for T in range(8):
                    d = dst + (((j >> 1) * 8 + T) * 8 + (j & 1) * 4 if nk > 1 else T * 4) + 2 * t
                    e(f'ds_read_b64_tr_b16 v[{d}:{d+1}], v{40+T} offset:{t*32768}')
            done = 0
            for q in range(n):
                j, t, g = q >> 3, (q >> 2) & 1, q & 3
                if HD0 < HD and q >= HD0:
                    l = self.lab('hd')
                    e(f's_cbranch_vccnz {l}'); e(f's_waitcnt vmcnt({HD0-1})'); e(f'{l}:')
                if q >= HD:
                    e(f's_waitcnt vmcnt({HD-1})')
                while 4 * done + 3 <= q - HD:
                    tr(done); done += 1
                if q >= 8 and g == 0:
                    assert done >= (q >> 2) - 1
                    e('s_waitcnt lgkmcnt(0)')
                if nk > 1 and q == 26 and 't' not in self.abl:
                    e(f'v_and_b32 v24, {4*self.JC-1}, v2'); e(f'buffer_load_dword v25, v24, {SD}, 0 offen offset:128')
                e(f's_add_u32 m0, s65, {t*32768+g*1024}')
                row = (t << wp[1]) | ((g & 1) << wp[2]) | ((g >> 1) << wp[3]) | ((j & 1) << wp[4]) | ((j >> 1) << wp[5])
                e(f's_xor_b32 s66, {sbase}, {row*1024}')
                if 'w' not in self.abl and not ('W' in self.abl and nk > 1 and q >= 4) and not ('d' in self.abl and nk == 1): e(f'buffer_load_dwordx4 v{va+(g&1)}, {srd}, s66 offen {self.wflags} lds')
            e('s_waitcnt vmcnt(0)')
            while done < 2 * nk:
                tr(done); done += 1
            e('s_waitcnt lgkmcnt(0)')
        def down():
            lx = self.lab('nf')
            e('s_cmp_eq_u32 s74, -1'); e(f's_cbranch_scc1 {lx}')
            self.srd(SC, 's20', 's21', 1376 * 1024)
            e('s_lshl_b32 s64, s74, 15'); e('s_lshl_b32 s66, s34, 8'); e('s_add_u32 s64, s64, s66')
            stage(SC, 's64', 1, 96, 22, (1, 2, 3, 4, 5, 6), self.DD, self.DD)
            e(f'{lx}:')
        if self.downfirst and not self.LD:
            down()
        e('s_lshl_b32 s64, s33, 17'); e('s_lshl_b32 s66, s34, 8'); e('s_add_u32 s64, s64, s66')
        keep = 0x7e & ~(1 << wp[0])
        e('s_mov_b32 s68, 0')
        for reg, cs in (('s34', self.wcw), ('s2', self.wcols)):
            for b, c in enumerate(cs):
                if c & keep:
                    e(f's_bitcmp1_b32 {reg}, {b}'); e(f's_cselect_b32 s66, {c & keep}, 0'); e('s_xor_b32 s68, s68, s66')
        e('s_lshl_b32 s66, s68, 10'); e('s_add_u32 s64, s64, s66')
        stage(SB, 's64', 4, 128, 16, wp, HD0, HD)
        if not self.downfirst and not self.LD:
            down()

    def gemm_role(self):
        e = self.e
        A0, ACC, X = 128, 64, 192
        e('; ---- P / Q role: [8 x 512] @ [512 x 64]'); e('L_gemm:')
        e('v_and_b32 v16, 7, v0'); e('v_lshlrev_b32 v16, 10, v16')
        e('v_and_b32 v17, 8, v0'); e('v_lshl_add_u32 v16, v17, 3, v16')
        e('v_and_b32 v17, 48, v0'); e('v_add_u32 v16, v16, v17')
        e('s_lshl_b32 s67, s34, 8')
        e('v_lshrrev_b32 v19, 3, v0'); e('v_and_b32 v17, 2, v19'); e('v_and_b32 v18, 7, v0'); e('v_xor_b32 v17, v17, v18')
        e('v_xor_b32 v18, 4, v17'); e('v_lshlrev_b32 v17, 4, v17'); e('v_lshlrev_b32 v18, 4, v18')
        e('s_cmp_lt_u32 s2, 48'); e('s_cbranch_scc0 L_gq0')
        self.srd(SA, 's24', 's25', 512 * 6144)
        self.srd(SC, 's22', 's23', 8192)
        e('s_mov_b32 s70, 6144'); e('s_lshl_b32 s64, s72, 7')
        e('s_branch L_g1')
        e('L_gq0:')
        self.srd(SA, 's10', 's11', 512 * 8192)
        self.srd(SC, 's4', 's5', 8192)
        e('s_mov_b32 s70, 8192'); e('s_sub_u32 s64, s72, 48'); e('s_lshl_b32 s64, s64, 7')
        e('L_g1:')
        if 'G' in self.abl:
            e('s_mov_b32 s70, 128'); e('s_lshl_b32 s64, s64, 9')
        for u in range(2):
            e(f'buffer_load_dwordx4 v[{X+4*u}:{X+4*u+3}], v16, {SC}, s67 offen offset:{128*u}')
        e('v_mul_lo_u32 v19, s70, v19'); e('v_add_u32 v17, v17, v19'); e('v_add_u32 v18, v18, v19')
        e('s_lshl_b32 s66, s70, 7'); e('s_mul_i32 s66, s66, s34'); e('s_add_u32 s64, s64, s66')
        e('s_lshl_b32 s70, s70, 3')
        e('s_lshl_b32 s65, s34, 13'); e(f's_add_u32 s65, s65, {L_BIG}')
        e('s_cmp_lt_u32 s2, 16'); e(f's_cselect_b32 s71, 0, 2'); e('s_cmp_ge_u32 s2, 48'); e('s_cselect_b32 s71, 1, s71')
        for t in range(16):
            if t >= min(self.QD, self.PD):
                l = self.lab('pace')
                if t >= self.UD:
                    l0 = self.lab('pace')
                    e('s_cmp_eq_u32 s71, 0'); e(f's_cbranch_scc0 {l0}'); e(f's_waitcnt vmcnt({self.UD-1})'); e(f'{l0}:')
                if t >= self.QD:
                    e('s_cmp_eq_u32 s71, 0'); e(f's_cbranch_scc1 {l}'); e(f's_waitcnt vmcnt({self.QD-1})')
                e('s_cmp_eq_u32 s71, 2'); e(f's_cbranch_scc0 {l}'); e(f's_waitcnt vmcnt({self.PD-1})')
                e(f'{l}:')
            e(f's_add_u32 m0, s65, {(t&7)*1024 + (t>>3)*32768}')
            e('s_nop 0')
            if 'l' in self.abl:
                ll = self.lab('abl'); e('s_sub_u32 s68, s2, 16'); e('s_cmp_lt_u32 s68, 32'); e(f's_cbranch_scc1 {ll}')
            if 'g' not in self.abl: e(f'buffer_load_dwordx4 v{17+(t&1)}, {SA}, s64 offen {self.gflags} lds')
            if 'l' in self.abl:
                e(f'{ll}:')
            e('s_add_u32 s64, s64, s70')
        self.stamp(12)
        e('s_waitcnt vmcnt(16)')
        if self.PC:
            l = self.lab('pc')
            e('s_cmp_eq_u32 s77, 0'); e(f's_cbranch_scc1 {l}')
            e('s_lshl_b32 s66, s2, 2'); e('v_mov_b32 v20, s66'); e('v_mov_b32 v21, -1'); e('s_mov_b64 exec, 1')
            e('global_store_dword v20, v21, s[28:29] sc1')
            e('s_mov_b64 exec, -1')
            self.stamp(10)
            e(f'{l}:')
        self.stamp(13)
        e('s_cmp_eq_u32 s34, %d' % (9 if 'b' in self.abl else 0)); e('s_cselect_b32 s73, 48, 0x1000')
        e('v_and_b32 v30, 15, v0'); e('v_lshlrev_b32 v30, 2, v30')
        l = self.lab('fl')
        e('s_cmp_ge_u32 s2, s73'); e(f's_cbranch_scc0 {l}')
        e(f'buffer_load_dword v31, v30, {SD}, 0 offen sc1')
        e(f'{l}:')
        B = 48
        e('s_mov_b32 s68, 0xffff0000')
        e('s_cmp_lt_u32 s2, 48'); e('s_cbranch_scc0 L_gq1')
        e('s_mov_b32 s66, 0xbfb8aa3b')
        for i in range(8):
            e(f'v_lshlrev_b32 v20, 16, v{X+i}'); e(f'v_and_b32 v21, s68, v{X+i}')
            e('v_mul_f32 v22, s66, v20'); e('v_mul_f32 v23, s66, v21')
            e('v_exp_f32 v22, v22'); e('v_exp_f32 v23, v23'); e('s_nop 0')
            e('v_add_f32 v22, 1.0, v22'); e('v_add_f32 v23, 1.0, v23')
            e('v_rcp_f32 v22, v22'); e('v_rcp_f32 v23, v23'); e('s_nop 0')
            e('v_mul_f32 v20, v20, v22'); e('v_mul_f32 v21, v21, v23')
            e(f'v_cvt_pk_bf16_f32 v{B+i}, v20, v21')
        e('s_branch L_g2')
        e('L_gq1:')
        LN = 96
        e('v_and_b32 v32, 7, v0'); e('v_lshlrev_b32 v32, 2, v32')
        for i in range(8):
            e(f'v_lshlrev_b32 v{LN+2*i}, 16, v{X+i}'); e(f'v_and_b32 v{LN+2*i+1}, s68, v{X+i}')
        e(f'v_add_f32 v20, v{LN}, v{LN+1}')
        for i in range(2, 16):
            e(f'v_add_f32 v20, v20, v{LN+i}')
        e('s_nop 1')
        e(f'v_add_f32_dpp v20, v20, v20 row_ror:8 {DPPF}')
        self.allreduce_rows('v_add_f32', 20, 22)
        e('v_mul_f32 v20, 0x3c000000, v20')
        e('v_mov_b32 v21, 0')
        for i in range(16):
            e(f'v_sub_f32 v22, v{LN+i}, v20'); e('v_fmac_f32 v21, v22, v22')
        e('s_nop 1')
        e(f'v_add_f32_dpp v21, v21, v21 row_ror:8 {DPPF}')
        self.allreduce_rows('v_add_f32', 21, 22)
        e('v_lshlrev_b32 v22, 1, v32'); e('s_lshl_b32 s66, s34, 6'); e('v_add_u32 v23, s66, v22')
        e(f'ds_write_b64 v23, v[20:21] offset:{L_ST}')
        e('v_mov_b32 v23, 0')
        e('s_waitcnt lgkmcnt(0)')
        e('s_mov_b64 exec, 1')
        e(f'ds_add_u32 v23, v9 offset:{L_CNT2}')
        e('s_mov_b64 exec, -1')
        self.poll(lambda: e(f'ds_read_b32 v24, v23 offset:{L_CNT2}'), 's_waitcnt lgkmcnt(0)',
                  lambda: e('v_cmp_gt_u32 vcc, 4, v24'))
        for w in range(4):
            e(f'ds_read_b64 v[{112+2*w}:{113+2*w}], v22 offset:{L_ST+64*w}')
        e('s_waitcnt lgkmcnt(0)')
        e('v_add_f32 v20, v112, v114'); e('v_add_f32 v21, v116, v118'); e('v_add_f32 v20, v20, v21'); e('v_mul_f32 v20, 0x3e800000, v20')
        e('v_add_f32 v24, v113, v115'); e('v_add_f32 v21, v117, v119'); e('v_add_f32 v24, v24, v21')
        e('v_mov_b32 v21, 0')
        for w in range(4):
            e(f'v_sub_f32 v22, v{112+2*w}, v20'); e('v_fmac_f32 v21, v22, v22')
        e('v_fmac_f32 v24, 0x43000000, v21')
        e('v_mul_f32 v24, 0x3b000000, v24')
        self.ln_fin(20, 24)
        for i in range(16):
            e(f'v_sub_f32 v{LN+i}, v{LN+i}, v20'); self.rnd(LN + i, LN + i)
            e(f'v_mul_f32 v{LN+i}, v{LN+i}, v24'); self.rnd(LN + i, LN + i)

        e('L_g2:')
        l = self.lab('fl')
        e('s_cmp_ge_u32 s2, s73'); e(f's_cbranch_scc0 {l}')
        e('s_waitcnt vmcnt(0)'); e('v_cmp_eq_u32 vcc, 0, v31'); e(f's_cbranch_vccz {l}')
        self.poll(lambda: e(f'buffer_load_dword v31, v30, {SD}, 0 offen sc1'), 's_waitcnt vmcnt(0)',
                  lambda: e('v_cmp_eq_u32 vcc, 0, v31'), sleep=self.flagsleep)
        e(f'{l}:')
        e('v_mov_b32 v20, 0')
        self.if_w(0, lambda: e(f'ds_write_b32 v20, v9 offset:{L_FLG}'))
        self.stamp(14)
        self.stamp(15)
        e('v_lshrrev_b32 v18, 4, v0'); e('v_bfe_u32 v19, v0, 2, 2')
        e('v_lshrrev_b32 v20, 1, v19'); e('v_and_b32 v21, 1, v18'); e('v_lshl_add_u32 v20, v21, 1, v20')
        e('v_lshlrev_b32 v20, 5, v20')
        e('v_lshl_add_u32 v20, v18, 10, v20'); e('v_lshl_add_u32 v20, v19, 7, v20')
        e('v_and_b32 v21, 3, v0'); e('v_lshl_add_u32 v20, v21, 3, v20')
        e('v_add_u32 v40, s65, v20')
        for T in range(1, 4):
            e(f'v_xor_b32 v{40+T}, {32*T}, v40')
        for j in range(4):
            if self.PC:
                l, l2 = self.lab('pc'), self.lab('pc')
                e('s_cmp_eq_u32 s77, 0'); e(f's_cbranch_scc1 {l}')
                e(f's_waitcnt vmcnt({13-4*j}) lgkmcnt(0)'); e(f's_branch {l2}')
                e(f'{l}:'); e(f's_waitcnt vmcnt({12-4*j}) lgkmcnt(0)'); e(f'{l2}:')
            else:
                e(f's_waitcnt vmcnt({12-4*j}) lgkmcnt(0)')
            for T in range(4):
                for t in range(2):
                    d = A0 + (j * 4 + T) * 4 + 2 * t
                    e(f'ds_read_b64_tr_b16 v[{d}:{d+1}], v{40+T} offset:{(j&1)*4096+(j>>1)*32768+t*512}')
        e('s_waitcnt lgkmcnt(0)')
        self.stamp(16)
        e('s_cmp_eq_u32 s34, %d' % (9 if 'B' in self.abl else 2)); e('s_cselect_b32 s73, 16, 0x1000')
        e(f'v_and_b32 v30, {self.JC-1}, v0'); e('v_lshlrev_b32 v30, 2, v30')
        l = self.lab('fl')
        e('s_cmp_ge_u32 s2, s73'); e(f's_cbranch_scc0 {l}')
        e(f'buffer_load_dword v31, v30, {SD}, 0 offen offset:128 sc1')
        e(f'{l}:')
        e('s_cmp_lt_u32 s2, 48'); e('s_cbranch_scc1 L_g3')
        e('v_mov_b32 v20, 0')
        self.poll(lambda: e(f'ds_read_b32 v22, v20 offset:{L_FLG}'), 's_waitcnt lgkmcnt(0)',
                  lambda: e('v_cmp_eq_u32 vcc, 0, v22'), sleep=1)
        self.stamp(17)
        S, C = X, X + 8
        e('s_lshl_b32 s64, s34, 11'); e(f's_add_u32 s64, s64, {WS_MOD}'); e('s_add_u32 s66, s64, 8192')

        def modissue():
            for u in range(2):
                e(f'buffer_load_dwordx4 v[{S+4*u}:{S+4*u+3}], v1, {WS}, s64 offen offset:{1024*u} sc1')
                e(f'buffer_load_dwordx4 v[{C+4*u}:{C+4*u+3}], v1, {WS}, s66 offen offset:{1024*u} sc1')
        if 'A' in self.abl:
            pass
        elif 'a' in self.abl:
            modissue(); e('s_waitcnt vmcnt(0)')
        else:
            self.poll(modissue, 's_waitcnt vmcnt(0)', lambda: self.sent_check(range(S, S + 16), 22), sleep=self.modsleep)
        if self.diag == 1:
            e('s_add_u32 s88, s75, s100')
        self.stamp(6)
        for i in range(8):
            e(f'v_lshlrev_b32 v20, 16, v{C+i}'); e(f'v_and_b32 v21, s68, v{C+i}')
            e('v_add_f32 v20, 1.0, v20'); e('v_add_f32 v21, 1.0, v21')
            self.rnd(20, 20); self.rnd(21, 21)
            e(f'v_mul_f32 v20, v20, v{LN+2*i}'); e(f'v_mul_f32 v21, v21, v{LN+2*i+1}')
            self.rnd(20, 20); self.rnd(21, 21)
            e(f'v_lshlrev_b32 v22, 16, v{S+i}'); e(f'v_and_b32 v23, s68, v{S+i}')
            e('v_add_f32 v20, v20, v22'); e('v_add_f32 v21, v21, v23')
            e(f'v_cvt_pk_bf16_f32 v{B+i}, v20, v21')
        e('L_g3:')
        l = self.lab('fl')
        e('s_cmp_ge_u32 s2, s73'); e(f's_cbranch_scc0 {l}')
        e('s_waitcnt vmcnt(0)'); e('v_cmp_eq_u32 vcc, 0, v31'); e(f's_cbranch_vccz {l}')
        self.poll(lambda: e(f'buffer_load_dword v31, v30, {SD}, 0 offen offset:128 sc1'), 's_waitcnt vmcnt(0)',
                  lambda: e('v_cmp_eq_u32 vcc, 0, v31'), sleep=self.flagsleep)
        e(f'{l}:')
        e('s_nop 1')
        for u in range(2):
            for hi in range(2):
                for T in range(4):
                    a = A0 + ((2 * u + hi) * 4 + T) * 4
                    d = ACC + (hi * 4 + T) * 4
                    c = '0' if u == 0 else f'v[{d}:{d+3}]'
                    e(f'v_mfma_f32_16x16x32_bf16 v[{d}:{d+3}], v[{a}:{a+3}], v[{B+4*u}:{B+4*u+3}], {c}')
        e('v_and_b32 v20, 7, v0'); e(f'v_mul_u32_u24 v20, {RED_PITCH}, v20')
        e('v_and_b32 v21, 8, v0'); e('v_lshl_add_u32 v20, v21, 3, v20')
        e('v_and_b32 v21, 48, v0'); e('v_add_u32 v20, v20, v21')
        e(f's_mul_i32 s64, s34, {RED_W}'); e(f's_add_u32 s64, s64, {L_RED}'); e('v_add_u32 v20, s64, v20')
        e('s_nop 7')
        for s in range(2):
            for r in range(4):
                lo0, hi0 = ACC + (2 * s) * 4 + r, ACC + (4 + 2 * s) * 4 + r
                lo1, hi1 = ACC + (2 * s + 1) * 4 + r, ACC + (4 + 2 * s + 1) * 4 + r
                e(f'v_add_f32_dpp v{24+4*s+r}, v{hi0}, v{lo0} row_ror:8 row_mask:0xf bank_mask:0x3')
                e(f'v_add_f32_dpp v{24+4*s+r}, v{lo1}, v{hi1} row_ror:8 row_mask:0xf bank_mask:0xc')
            e(f'ds_write_b128 v20, v[{24+4*s}:{27+4*s}] offset:{128*s}')
        e('v_mov_b32 v20, 0')
        e('s_waitcnt lgkmcnt(0)')
        e('s_mov_b64 exec, 1')
        e(f'ds_add_u32 v20, v9 offset:{L_CNT}')
        e('s_mov_b64 exec, -1')
        self.stamp(18)
        e('s_cmp_eq_u32 s34, 0'); e('s_cbranch_scc0 L_waitq')
        e('s_cmp_lt_u32 s2, 16'); e('s_cbranch_scc0 L_gq2')
        e('v_and_b32 v21, 7, v0'); e('v_lshrrev_b32 v22, 4, v0'); e('v_and_b32 v23, 8, v0'); e('v_lshrrev_b32 v23, 1, v23')
        e('v_add_u32 v22, v22, v23')
        e('v_mov_b32 v23, v1')
        e('s_lshl_b32 s64, s72, 10'); e(f's_add_u32 s64, s64, {WS_MOD}')
        e('s_branch L_g4')
        e('L_gq2:')
        e('v_lshrrev_b32 v21, 3, v0'); e('v_and_b32 v22, 7, v0')
        e(f's_mov_b32 s64, {WS_BLK - 48*128}')
        e('s_cmp_lt_u32 s2, 48'); e(f's_cselect_b32 s64, {WS_BLK + 8192 - 16*128}, s64'); e(f's_mov_b32 s65, {BP}')
        e('v_mul_lo_u32 v23, s65, v21'); e('v_lshl_add_u32 v23, v22, 4, v23')
        e('s_lshl_b32 s66, s72, 7'); e('s_add_u32 s64, s64, s66')
        e('L_g4:')
        e(f'v_mul_u32_u24 v21, {RED_PITCH}, v21'); e('v_lshl_add_u32 v21, v22, 5, v21'); e(f'v_add_u32 v21, {L_RED}, v21')
        self.poll(lambda: e(f'ds_read_b32 v22, v20 offset:{L_CNT}'), 's_waitcnt lgkmcnt(0)',
                  lambda: e('v_cmp_gt_u32 vcc, 4, v22'))
        for w in range(4):
            for s in range(2):
                d = ACC + 8 * w + 4 * s
                e(f'ds_read_b128 v[{d}:{d+3}], v21 offset:{w*RED_W + 16*s}')
        self.stamp(19)
        e('s_waitcnt lgkmcnt(0)')
        for w in range(1, 4):
            for i in range(8):
                e(f'v_add_f32 v{ACC+i}, v{ACC+i}, v{ACC+8*w+i}')
        for i in range(4):
            e(f'v_cvt_pk_bf16_f32 v{24+i}, v{ACC+2*i}, v{ACC+2*i+1}')
        for i in range(4):
            e(f'v_min_u32 v{24+i}, -2, v{24+i}')
        if 'e' not in self.abl:
            e(f'buffer_store_dwordx4 v[24:27], v23, {WS}, s64 offen {self.pflags}')

    def ln_fin(self, mu, var):
        e = self.e
        self.rnd(var, var); self.rnd(mu, mu)
        e(f'v_add_f32 v{var}, 0x3727c5ac, v{var}')
        self.rnd(var, var)
        e(f'v_sqrt_f32 v{var}, v{var}'); e('s_nop 0')
        self.rnd(var, var)
        e(f'v_rcp_f32 v{var}, v{var}'); e('s_nop 0')

    def tail(self):
        e = self.e
        ACC, AOP = 64, 48
        self.ts(1)
        if self.OA:
            for k in range(4):
                e(f'ds_read_b128 v[{20+4*k}:{23+4*k}], v12 offset:{L_OP + 256*(k>>1) + 16*(k&1)}')
            e('s_waitcnt lgkmcnt(2)')
            for k in range(4):
                e(f'v_cvt_pk_bf16_f32 v{AOP+k}, v{20+2*k}, v{21+2*k}')
            e('s_waitcnt lgkmcnt(0)')
            for k in range(4, 8):
                e(f'v_cvt_pk_bf16_f32 v{AOP+k}, v{20+2*k}, v{21+2*k}')
        else:
            for w in range(4):
                e(f'ds_read_b64 v[{20+2*w}:{21+2*w}], v10 offset:{L_OP+512*w}')
            if self.GP == 5:
                l = self.lab('tk')
                e(f's_cmp_lt_u32 s2, {self.TKW}'); e(f's_cbranch_scc0 {l}')
                e('s_and_b32 s71, s2, 7'); e('s_lshl_b32 s71, s71, 9'); e(f's_add_u32 s71, s71, {WS_PRG + 256}')
                e('v_mov_b32 v28, 1'); e('s_mov_b64 exec, 1')
                e(f'buffer_atomic_add v28, off, {WS}, s71 sc0')
                e('s_mov_b64 exec, -1')
                e(f'{l}:')
            e('s_waitcnt lgkmcnt(2)')
            e('v_pk_add_f32 v[20:21], v[20:21], v[22:23]')
            e('s_waitcnt lgkmcnt(1)')
            e('v_pk_add_f32 v[20:21], v[20:21], v[24:25]')
            e('s_waitcnt lgkmcnt(0)')
            e('v_pk_add_f32 v[20:21], v[20:21], v[26:27]')
            e('v_cvt_pk_bf16_f32 v20, v20, v21')
            e('ds_write_b32 v11, v20')
            for j in range(2):
                e(f'ds_read_b128 v[{AOP+4*j}:{AOP+4*j+3}], v12 offset:{128*j}')
        sm = lambda j, T: e(f'v_smfmac_f32_16x16x64_bf16 v[{ACC+4*T}:{ACC+4*T+3}], v[{AOP+4*j}:{AOP+4*j+3}], v[{128+(j*8+T)*8}:{135+(j*8+T)*8}], v15')
        add = lambda T: e(f'v_add_f32 v{ACC+4*T}, v{ACC+4*T}, v{ACC+4*T+1}')
        cvt = lambda t: e(f'v_cvt_pk_bf16_f32 v{20+t}, v{ACC+8*t}, v{ACC+8*t+4}')
        if not self.OA:
            e('s_waitcnt lgkmcnt(1)')
        for T in range(4):
            sm(0, T)
        if not self.OA:
            e('s_waitcnt lgkmcnt(0)')
        for T in range(4):
            sm(1, T)
        for T in range(4, 8):
            sm(0, T)
        sm(1, 4); add(0); sm(1, 5); add(1); add(2); sm(1, 6); add(3); cvt(0); sm(1, 7); cvt(1)
        add(4); e('s_mov_b64 exec, 0xffff'); add(5); cvt(2); e('s_nop 0'); add(6); e('s_nop 0'); add(7); cvt(3)
        e(f'buffer_store_dwordx4 v[20:23], v13, {WS}, s69 offen sc1')
        e('s_mov_b64 exec, -1')
        self.ts(2)
        self.stamp(5)
        if self.GP == 2:
            self.gp()
        if self.GP == 5:
            self.gp_ticket()
        e('; ---- tail dispatch; reducer'); e('L_tail_s:')
        e('s_cmp_eq_u32 s74, -1'); e('s_cbranch_scc0 L_ffn')
        e('s_cmp_eq_u32 s3, 0'); e('s_cbranch_scc0 L_fin')
        e('s_sub_u32 s70, s2, 144'); e('s_cmp_lt_u32 s70, 64'); e('s_cbranch_scc0 L_fin')
        self.reducer()
        e('L_fin2:')
        self.fin()
        self.ffn()

    def gu_addr(self):
        e = self.e
        e('v_lshrrev_b32 v18, 4, v0'); e('v_bfe_u32 v19, v0, 2, 2'); e('v_bfe_u32 v20, v0, 1, 1')
        e('v_and_b32 v22, 1, v18'); e('v_lshl_add_u32 v22, v20, 1, v22'); e('v_xor_b32 v22, s34, v22')
        e('v_lshlrev_b32 v22, 4, v22'); e('v_lshl_add_u32 v22, v20, 15, v22')
        e('v_lshl_add_u32 v22, v18, 9, v22'); e('v_lshl_add_u32 v22, v19, 6, v22')
        e('v_and_b32 v20, 1, v0'); e('v_lshl_add_u32 v22, v20, 3, v22'); e(f'v_add_u32 v22, {L_BIG}, v22')

    def gu_read(self, a, b):
        e = self.e
        l = self.lab('gu')
        e('s_cmp_eq_u32 s73, 0'); e(f's_cbranch_scc1 {l}')
        for i in range(a, b):
            if i > a and (i - a) % 11 == 0:
                e('s_waitcnt lgkmcnt(4)')
            e(f'ds_read_b64_tr_b16 v[{128+2*i}:{129+2*i}], v22 offset:{2048*(i>>1)+256*(i&1)}')
        if self.LD and self.LDR != 3:
            for T in range(8):
                e(f'v_add_u32 v{68+T}, {L_DN - L_BIG - 4096}, v{40+T}')
            if self.LDR == 0:
                e('s_waitcnt lgkmcnt(0)')
                for i in range(16):
                    if i == 11:
                        e('s_waitcnt lgkmcnt(4)')
                    e(self.dn_read(i))
        e(f'{l}:')

    def dn_dma(self, a=0, b=8, setup=True):
        e = self.e
        if setup:
            self.dn_setup()
        for q in range(a, b):
            t, g = q >> 2, q & 3
            e(f's_add_u32 m0, s77, {t*4096+g*1024}')
            e(f's_xor_b32 s66, s76, {(4*t + 8*(g&1) + 16*(g>>1))*1024}')
            if 'd' not in self.abl:
                e(f'buffer_load_dwordx4 v{22+(g&1)}, {SC}, s66 offen {self.wflags} lds')

    def dn_setup(self):
        e = self.e
        if self.LDS_ is not None:
            e(f's_setprio {self.LDS_}')
        self.srd(SC, 's20', 's21', 1376 * 1024)
        e('v_lshrrev_b32 v18, 4, v0'); e('v_and_b32 v16, 15, v0'); e('v_xor_b32 v16, v16, v18'); e('v_xor_b32 v17, 4, v16')
        e('v_lshlrev_b32 v19, 10, v18'); e('v_lshl_add_u32 v22, v16, 4, v19'); e('v_lshl_add_u32 v23, v17, 4, v19')
        e('s_lshl_b32 s76, s74, 15'); e('s_lshl_b32 s66, s34, 8'); e('s_add_u32 s76, s76, s66')
        e('s_lshl_b32 s77, s34, 13'); e(f's_add_u32 s77, s77, {L_DN}')
        if self.LDR == 3:
            e('v_bfe_u32 v19, v0, 2, 2'); e('v_and_b32 v16, 2, v0'); e('v_lshlrev_b32 v16, 2, v16'); e('v_xor_b32 v16, v16, v19')
            e('v_and_b32 v17, 1, v18'); e('v_lshlrev_b32 v17, 2, v17'); e('v_xor_b32 v16, v16, v17'); e('v_lshlrev_b32 v16, 4, v16')
            e('v_lshl_add_u32 v16, v18, 10, v16'); e('v_lshl_add_u32 v16, v19, 8, v16')
            e('v_and_b32 v17, 1, v0'); e('v_lshl_add_u32 v16, v17, 3, v16'); e('v_add_u32 v68, s77, v16')
            for T in range(1, 8):
                e(f'v_xor_b32 v{68+T}, {16*T}, v68')

    def dn_read(self, i):
        T, t = i >> 1, i & 1
        return f'ds_read_b64_tr_b16 v[{96+4*T+2*t}:{97+4*T+2*t}], v{68+T} offset:{4096*t}'

    def rpoll(self, k, load, n, base, acc, d, first_wait, hook):
        e = self.e
        lp, lx = self.lab('rp'), self.lab('rx')
        e('s_mov_b32 s75, 0')
        e(first_wait)
        P = self.PP[k]
        if self.NQ[k]:
            ln, lz = self.lab('rn'), self.lab('rz')
            for r in range(P - 1):
                for i in range(n):
                    load(i)
                e(f's_sleep {self.PG[k]}')
            e(f'{ln}:')
            for i in range(0, n, 2):
                e(f'v_smfmac_f32_16x16x64_bf16 v[{acc}:{acc+3}], v[44:47], v[{base+4*i}:{base+4*i+7}], v43')
            for i in range(n):
                load(i)
            e('s_add_u32 s75, s75, 1'); e('s_and_b32 s78, s75, 15')
            if n < 6:
                e(f's_nop {5-n}')
            for r in range(4):
                e(f'v_add_f32_dpp v{d}, v{acc+r}, v{acc+r} row_ror:8 row_mask:{0xc if r >> 1 else 0x3:#x} bank_mask:{0xc if r & 1 else 0x3:#x}')
            e(f'v_cmp_u_f32 vcc, v{d}, v{d}')
            e(f's_cbranch_vccz {lz}')
            for r in range(4):
                e(f'v_mov_b32 v{acc+r}, 0')
            e(f's_waitcnt vmcnt({n*(P-1)})')
            e(f's_cbranch_scc1 {ln}')
            self.sent_check(range(base, base + 4 * n), 2)
            e(f's_cbranch_vccz {lx}')
            e(f's_cmp_lt_u32 s75, {CAP:#x}'); e(f's_cbranch_scc1 {ln}')
            e(f'{lx}:')
            for i in range(0, n, 2):
                e(f'v_smfmac_f32_16x16x64_bf16 v[{acc}:{acc+3}], v[44:47], v[{base+4*i}:{base+4*i+7}], v43')
            e('s_nop 7')
            for r in range(4):
                e(f'v_add_f32_dpp v{d}, v{acc+r}, v{acc+r} row_ror:8 row_mask:{0xc if r >> 1 else 0x3:#x} bank_mask:{0xc if r & 1 else 0x3:#x}')
            e(f'{lz}:')
            hook()
            return
        if P > 1:
            self.sent_check(range(base, base + 4 * n), 2)
            e(f's_cbranch_vccz {lx}')
            if self.PM[k]:
                e('s_mov_b64 exec, vcc')
            for r in range(P - 1):
                for i in range(n):
                    load(i)
                e(f's_sleep {self.PG[k]}')
        e(f'{lp}:')
        self.sent_check(range(base, base + 4 * n), 2)
        e(f's_cbranch_vccz {lx}')
        if self.PM[k]:
            e('s_mov_b64 exec, vcc')
        for i in range(n):
            load(i)
        e('s_add_u32 s75, s75, 1'); e(f's_cmp_lt_u32 s75, {CAP:#x}')
        e(f's_waitcnt vmcnt({n*(P-1)})')
        e(f's_cbranch_scc1 {lp}')
        e(f'{lx}:')
        if self.PM[k]:
            e('s_mov_b64 exec, -1')
        hook()
        for i in range(0, n, 2):
            e(f'v_smfmac_f32_16x16x64_bf16 v[{acc}:{acc+3}], v[44:47], v[{base+4*i}:{base+4*i+7}], v43')
        e('s_nop 7')
        for r in range(4):
            e(f'v_add_f32_dpp v{d}, v{acc+r}, v{acc+r} row_ror:8 row_mask:{0xc if r >> 1 else 0x3:#x} bank_mask:{0xc if r & 1 else 0x3:#x}')

    def reducer(self):
        e = self.e
        e('s_lshl_b32 s64, s70, 2'); e('s_lshr_b32 s67, s35, s64'); e('s_and_b32 s71, s67, 7')
        e('s_andn2_b32 s66, s70, 7'); e('s_add_u32 s66, s66, s71'); e('s_lshl_b32 s66, s66, 12'); e(f's_add_u32 s66, s66, {WS_P1}')
        p1load = lambda i: e(f'buffer_load_dwordx4 v[{16+4*i}:{19+4*i}], v1, {WS}, s66 offen offset:{1024*i} sc1')
        for i in range(4):
            p1load(i)
        for r in range(32, 36):
            e(f'v_mov_b32 v{r}, -1')
        e('s_and_b32 s64, s71, 6'); e('s_lshl_b32 s64, s64, 12'); e('s_and_b32 s65, s71, 1'); e('s_lshl_b32 s65, s65, 15'); e('s_or_b32 s64, s64, s65')
        e('s_lshr_b32 s65, s70, 3'); e('s_lshl_b32 s65, s65, 16'); e('s_add_u32 s64, s64, s65')
        if self.SK:
            e('s_lshr_b32 s65, s70, 4'); e('s_lshl_b32 s65, s65, 2'); e('s_and_b32 s67, s70, 7'); e('s_add_u32 s65, s65, s67')
            e('s_lshl_b32 s65, s65, 7'); e('s_add_u32 s64, s64, s65')
        e(f's_add_u32 s64, s64, {WS_P2}'); e('s_add_u32 s65, s64, 4096')
        for i in range(6):
            if i == 5:
                e('s_mov_b64 exec, 0xffffff')
            if 'C' not in self.abl:
                e(f'buffer_store_dwordx4 v[32:35], v1, {WS}, s{64+(i>>2)} offen offset:{1024*(i&3)} sc1')
        e('s_mov_b64 exec, -1')
        e('v_lshlrev_b32 v2, 2, v0')
        for k in range(3):
            e(f'ds_read_b32 v{8+k}, v2 offset:{L_BIG + 256*k}')
        self.srd(SE, 's26', 's27', 8192)
        self.colmap()
        e('s_lshl_b32 s73, s70, 7')
        e('v_and_b32 v11, 1, v0'); e('v_lshlrev_b32 v3, 4, v11')
        e('v_mov_b32 v7, 0x3f80'); e('v_lshlrev_b32 v7, v3, v7')
        e('v_and_b32 v2, 4, v0'); e('v_cmp_eq_u32 vcc, 0, v2')
        e('v_bfe_u32 v2, v0, 1, 1'); e('v_mul_u32_u24 v43, 0xaaaa, v2'); e('v_add_u32 v43, 0x4444, v43')
        e('v_cndmask_b32 v44, 0, v7, vcc'); e('v_sub_u32 v45, v7, v44'); e('v_mov_b32 v46, v44'); e('v_mov_b32 v47, v45')
        for i in range(48, 56):
            e(f'v_mov_b32 v{i}, 0')
        e(f's_add_u32 s68, s73, {WS_X1}')
        e('s_mov_b32 s76, 0xaaaaaaaa'); e('s_mov_b32 s77, 0xaaaaaaaa')
        e('v_cmp_gt_u32 vcc, 24, v0'); e('v_mov_b32 v41, 0x40000000'); e('v_lshl_add_u32 v12, v11, 13, v6'); e('v_cndmask_b32 v41, v41, v1, vcc')
        self.rpoll(0, p1load, 4, 16, 48, 13, 's_waitcnt vmcnt(0) lgkmcnt(0)', lambda: (self.stamp(5), self.ts(3)))
        e('v_fmac_f32 v8, v13, v9')
        e('s_nop 1')
        e(f'v_mov_b32_dpp v14, v8 quad_perm:[1,1,3,3] {DPPF}')
        def wide(src, mask):
            e('s_nop 1')
            for k in range(1, 4):
                e(f'v_mov_b32_dpp v{src+k}, v{src} row_shl:{2*k} {DPPF}')
            e(f's_mov_b32 exec_lo, {mask:#x}'); e(f's_mov_b32 exec_hi, {mask:#x}')
        if self.X2 and self.X4[0]:
            e(f'v_mov_b32_dpp v13, v8 quad_perm:[0,0,2,2] {DPPF}')
            e('v_cvt_pk_bf16_f32 v56, v13, v14')
            wide(56, 0x03030303)
            e(f'buffer_store_dwordx4 v[56:59], v12, {WS}, s68 offen sc1')
            e('s_mov_b64 exec, -1')
        elif self.X2:
            e(f'v_mov_b32_dpp v13, v8 quad_perm:[0,0,2,2] {DPPF}')
            e('v_cvt_pk_bf16_f32 v13, v13, v14')
            e(f'buffer_store_dword v13, v12, {WS}, s68 offen sc1')
        else:
            e('s_not_b64 exec, s[76:77]')
            e('v_cvt_pk_bf16_f32 v13, v8, v14')
            e(f'buffer_store_dword v13, v6, {WS}, s68 offen sc1')
            e('s_mov_b64 exec, -1')
        self.rnd(8, 8)
        self.stamp(6)
        self.ts(4)
        p2load = lambda i: e(f'buffer_load_dwordx4 v[{64+4*i}:{67+4*i}], v{41 if i == 5 else 1}, {WS}, s{64+(i>>2)} offen offset:{1024*(i&3)} sc1')
        for i in range(6):
            p2load(i)
        self.rpoll(2, p2load, 6, 64, 52, 13, 's_waitcnt vmcnt(0)', lambda: (self.stamp(7), self.ts(5)))
        e('v_fmac_f32 v8, v13, v10')
        e('s_nop 1')
        e(f'v_mov_b32_dpp v14, v8 quad_perm:[1,1,3,3] {DPPF}')
        if self.X4[1]:
            e('v_cvt_pk_bf16_f32 v56, v8, v14')
            wide(56, 0x01010101)
            e(f'buffer_store_dwordx4 v[56:59], v6, {SE}, s73 offen {self.outflags}')
        else:
            e('s_not_b64 exec, s[76:77]')
            e('v_cvt_pk_bf16_f32 v13, v8, v14')
            if 'o' not in self.abl:
                e(f'buffer_store_dword v13, v6, {SE}, s73 offen {self.outflags}')
        if self.HP and self.HC:
            e('s_mov_b64 exec, -1'); e('s_cmp_lt_u32 s70, 8'); e('s_cbranch_scc0 L_fin2')
            e('s_mov_b64 exec, 0xffffff' if self.GP == 5 else 's_mov_b64 exec, 0xffff')
            e(f'buffer_store_dwordx4 v[44:47], v1, {WS}, s62 offen sc1')
        e('s_mov_b64 exec, -1')

    def ffn(self):
        e = self.e
        ACC = 64
        if self.AL:
            e('.p2align 7')
            for k in range(self.AL - 1):
                e('s_nop 0'); e('s_nop 0')
        e('; ---- FFN role'); e('L_ffn:')
        e(f's_mul_i32 s67, s3, {BP}'); e(f's_add_u32 s67, s67, {WS_BLK + 8192 + 1024}')
        e('v_lshlrev_b32 v7, 3, v0')
        if self.diag == 2:
            l = self.lab('dg'); e('s_cmp_lt_u32 s3, 4'); e(f's_cbranch_scc0 {l}'); self.ts(7); e(f'{l}:')

        def cissue():
            for i in range(2):
                e(f'buffer_load_dwordx4 v[{8+4*i}:{11+4*i}], v1, {WS}, s67 offen offset:{1024*i} sc1')
        cissue()
        npost = 16 - self.NPRE - self.NS - self.NT
        l, l2 = self.lab('post'), self.lab('post')
        e('s_cmp_lt_u32 s3, 4'); e(f's_cbranch_scc1 {l}')
        if self.GTF:
            self.gate(self.GTF, 28)
        self.ffn_slab(16 - npost, 16, 16)
        e(f's_waitcnt vmcnt({npost})')
        e(f's_branch {l2}')
        e(f'{l}:')
        self.ffn_slab(16 - npost - self.NT, 16 - npost, 16)
        if self.LD == 1:
            self.dn_dma()
        e(f's_waitcnt vmcnt({self.NT + (8 if self.LD == 1 else 0)})')
        self.ts(8)
        e(f'{l2}:')
        l = self.lab('cb')
        self.sent_check(range(8, 16), 16)
        e(f's_cbranch_vccz {l}')
        self.poll(cissue, 's_waitcnt vmcnt(0)', lambda: self.sent_check(range(8, 16), 16))
        e(f'{l}:')
        SBR, CBR = 24, 32
        e('s_mov_b32 s68, 0xffff0000')
        for i in range(4):
            e(f'v_lshlrev_b32 v{SBR+2*i}, 16, v{8+i}'); e(f'v_and_b32 v{SBR+2*i+1}, s68, v{8+i}')
            e(f'v_lshlrev_b32 v{CBR+2*i}, 16, v{12+i}'); e(f'v_and_b32 v{CBR+2*i+1}, s68, v{12+i}')
        for i in range(8):
            e(f'v_add_f32 v{CBR+i}, 1.0, v{CBR+i}')
        e('v_lshrrev_b32 v2, 3, v0'); e('v_bfe_u32 v3, v0, 1, 3'); e('v_and_b32 v4, 3, v3')
        e('s_lshl_b32 s64, s3, 1'); e('v_xor_b32 v3, s64, v3')
        e('v_lshlrev_b32 v5, 10, v2'); e('v_lshl_add_u32 v5, v4, 8, v5'); e('v_lshl_add_u32 v5, v3, 4, v5')
        e('v_and_b32 v4, 1, v0'); e('v_lshl_add_u32 v5, v4, 3, v5'); e(f'v_add_u32 v5, {L_H2}, v5'); e('v_xor_b32 v6, 16, v5')
        e('v_mul_u32_u24 v16, 0xaaaa, v4'); e('v_add_u32 v16, 0x4444, v16')
        e('v_lshrrev_b32 v2, 4, v0'); e('v_bfe_u32 v3, v0, 3, 1')
        e('v_xor_b32 v7, v2, v0'); e('v_lshlrev_b32 v7, 4, v7'); e(f'v_add_u32 v7, {L_H2}, v7'); e('v_xor_b32 v8, 64, v7')
        e('v_and_b32 v4, 7, v0'); e('v_and_b32 v9, 0x38, v0'); e('v_lshlrev_b32 v9, 3, v9'); e('v_lshl_add_u32 v9, v4, 1, v9')
        e('s_lshl_b32 s64, s34, 4'); e('v_add_u32 v9, s64, v9')
        e('v_and_b32 v10, 12, v0'); e('v_lshlrev_b32 v10, 5, v10'); e('v_and_b32 v4, 1, v0'); e('v_lshl_add_u32 v10, v4, 6, v10'); e('v_lshl_add_u32 v10, v2, 4, v10')
        e('v_mov_b32 v17, 0xbfb8aa3b')
        for i in range(4):
            e(f'v_mov_b32 v{ACC+i}, 0')
        e('s_lshl_b32 s64, s34, 3'); e('s_lshr_b32 s64, s35, s64'); e('v_lshlrev_b32 v3, 2, v3'); e('v_bfe_u32 v3, s64, v3, 3')
        e('v_and_b32 v11, 6, v3'); e('v_lshlrev_b32 v11, 12, v11'); e('v_and_b32 v3, 1, v3'); e('v_lshl_add_u32 v11, v3, 15, v11')
        e('v_lshl_add_u32 v11, v2, 17, v11'); e(f'v_and_b32 v4, {0xf0 if self.SK else 0x70}, v1'); e('v_add_u32 v11, v11, v4')
        if self.SK:
            e('v_lshl_add_u32 v11, v2, 9, v11'); e('s_lshl_b32 s64, s34, 8'); e('v_add_u32 v11, s64, v11')
        e('s_lshl_b32 s69, s74, 7'); e(f's_add_u32 s69, s69, {WS_P2}'); e('s_add_u32 s72, s69, 65536')
        e('s_lshl_b32 s64, s3, 10')
        if self.X2:
            e('s_lshl_b32 s65, s2, 2'); e('s_lshr_b32 s65, s35, s65'); e(f's_and_b32 s65, s65, 2'); e('s_lshl_b32 s65, s65, 12'); e('s_add_u32 s64, s64, s65')
        e(f's_add_u32 s64, s64, {WS_X1}')
        e('v_mov_b32 v14, 0xbb000000'); e('v_mov_b32 v15, 0x3b000000')
        X, Dd, DC = 56, 40, 48
        xload = lambda i: e(f'buffer_load_dwordx4 v[{X}:{X+3}], v1, {WS}, s64 offen sc1')
        self.gu_addr()
        e('s_lshr_b32 s73, s3, 2')
        if self.LD == 1 and self.LDW:
            l = self.lab('ldw'); e('s_cmp_lt_u32 s3, 4'); e(f's_cbranch_scc1 {l}'); e('s_waitcnt vmcnt(0)'); e(f'{l}:')
        else:
            e('s_waitcnt vmcnt(0)')
        if self.diag == 2:
            l = self.lab('dg'); e('s_cmp_lt_u32 s3, 4'); e(f's_cbranch_scc0 {l}'); self.ts(6); e(f'{l}:')
        e('s_barrier')
        self.stamp(8)
        self.ts(3)
        l = self.lab('x')
        if self.XF:
            xload(0)
        self.gu_read(0, 32)
        if self.TP is not None:
            e(f's_setprio {self.TP}')
        if self.LD == 2:
            l3, l4 = self.lab('dma'), self.lab('dma')
            e('s_cmp_lt_u32 s3, 4'); e(f's_cbranch_scc0 {l3}')
            self.dn_dma(0, self.LDQ)
            e(f's_waitcnt vmcnt({self.LDQ})'); e(f's_branch {l4}')
            e(f'{l3}:'); e('s_waitcnt vmcnt(0)'); e(f'{l4}:')
        e('s_mov_b32 s73, 0x3f803f80'); e('v_mov_b32 v20, 0'); e('v_mov_b32 v21, 0')
        if self.XF:
            if self.LD != 2:
                e('s_waitcnt vmcnt(0)')
            self.sent_check(range(X, X + 4), 12); e(f's_cbranch_vccz {l}')
        self.ppoll(1, xload, 1, X, 12)
        e(f'{l}:')
        self.stamp(6)
        self.ts(4)

        def dn_rest():
            l5 = self.lab('dma')
            e('s_cmp_lt_u32 s3, 4'); e(f's_cbranch_scc0 {l5}')
            self.srd(SC, 's20', 's21', 1376 * 1024)
            self.dn_dma(self.LDQ, 8, False)
            e(f'{l5}:')
        if self.LD == 2 and self.LDQ < 8 and self.LDX == 0:
            dn_rest()
        pr = lambda r: f'v[{r}:{r+1}]'
        if self.TP is not None:
            e('s_setprio 3')
        for i in range(4):
            e(f'v_dot2c_f32_bf16 v20, s73, v{X+i}'); e(f'v_dot2c_f32_bf16 v21, v{X+i}, v{X+i}')
        fill = []
        for i in range(4):
            fill += [f'v_lshlrev_b32 v{Dd+2*i}, 16, v{X+i}', f'v_and_b32 v{Dd+2*i+1}, s68, v{X+i}']
        fill += [f'v_pk_mul_f32 {pr(DC+i)}, {pr(Dd+i)}, {pr(CBR+i)}' for i in range(0, 8, 2)]

        def gap(n=2):
            for k in range(n):
                e(fill.pop(0) if fill else 's_nop 0')
        gap(3)
        e('v_permlane32_swap_b32 v20, v21')
        e('v_add_f32 v12, v20, v21'); gap()
        for dpp in ['quad_perm:[1,0,3,2]', 'quad_perm:[2,3,0,1]', 'row_ror:4', 'row_ror:8']:
            e(f'v_add_f32_dpp v12, v12, v12 {dpp} {DPPF}'); gap()
        e(f'v_add_f32_dpp v12, v12, v12 row_bcast:15 row_mask:0xa bank_mask:0xf'); e('s_nop 0')
        e('v_readlane_b32 s70, v12, 16'); e('v_readlane_b32 s71, v12, 48')
        e('s_nop 0')
        e('v_mul_f32 v12, s70, v14'); e('v_mul_f32 v13, s71, v15')
        e('v_fma_f32 v13, -v12, v12, v13'); e('v_max_f32 v13, 0, v13'); e('v_add_f32 v13, 0x3727c5ac, v13')
        e('v_rsq_f32 v2, v13')
        for i in range(0, 8, 2):
            e(f'v_pk_fma_f32 {pr(DC+i)}, v[12:13], {pr(CBR+i)}, {pr(DC+i)} op_sel_hi:[0,1,1]')
        for i in (0, 4, 2, 6):
            e(f'v_pk_fma_f32 {pr(SBR+i)}, v[2:3], {pr(DC+i)}, {pr(SBR+i)} op_sel_hi:[0,1,1]')
        e(f'v_cvt_pk_bf16_f32 v40, v{SBR}, v{SBR+1}'); e(f'v_cvt_pk_bf16_f32 v41, v{SBR+4}, v{SBR+5}')
        e('ds_write_b64 v5, v[40:41]')
        e(f'v_cvt_pk_bf16_f32 v42, v{SBR+2}, v{SBR+3}'); e(f'v_cvt_pk_bf16_f32 v43, v{SBR+6}, v{SBR+7}')
        e('ds_write_b64 v6, v[42:43]')
        if self.LD == 2 and self.LDQ < 8 and self.LDX == 1:
            dn_rest()
        e('s_cmp_lt_u32 s3, 4')
        if self.LD == 2 and self.LDR == 1:
            l = self.lab('dw')
            e(f's_cbranch_scc0 {l}'); e('s_waitcnt vmcnt(0)'); e(f'{l}:')
        e('s_waitcnt lgkmcnt(0)')
        self.ts(5)
        e('s_barrier')
        e('s_cbranch_scc1 L_bar_fin')
        self.ts(6)
        B = 192
        for j in range(8):
            e(f'ds_read_b128 v[{B+4*j}:{B+4*j+3}], v{7+(j&1)} offset:{1024*j}')
        for j in range(8):
            late = self.LD and self.LDR == 1
            e(f's_waitcnt lgkmcnt({7-j + (2*j if late else 0)})')
            e(f'v_smfmac_f32_16x16x64_bf16 v[{ACC}:{ACC+3}], v[{B+4*j}:{B+4*j+3}], v[{128+8*j}:{135+8*j}], v16')
            if late:
                e(self.dn_read(2 * j)); e(self.dn_read(2 * j + 1))
        e('s_nop 7')
        e(f'v_add_f32 v{ACC+2}, v{ACC+2}, v{ACC+3}'); e(f'v_add_f32 v{ACC}, v{ACC}, v{ACC+1}')
        e(f'v_mul_f32 v18, v{ACC}, v17')
        e(f'v_mul_f32_dpp v18, v{ACC+2}, v17 row_ror:8 row_mask:0xf bank_mask:0xc')
        e('v_exp_f32 v18, v18')
        e(f'v_mov_b32_dpp v{ACC+2}, v{ACC} row_ror:8 row_mask:0xf bank_mask:0x3')
        e('v_add_f32 v18, 1.0, v18')
        e('v_rcp_f32 v18, v18'); e('s_nop 0')
        e(f'v_mul_f32 v18, v18, v{ACC+2}')
        e('v_cvt_pk_bf16_f32 v18, v18, v18')
        e(f'ds_write_b16 v9, v18 offset:{L_HH}')
        e('s_waitcnt lgkmcnt(0)')
        self.ts(7)
        e('s_barrier')

        def down_gemm():
            e(f'ds_read_b128 v[48:51], v10 offset:{L_HH}')
            mm = lambda T: e(f'v_mfma_f32_16x16x32_bf16 v[{192+4*T}:{195+4*T}], v[48:51], v[{96+4*T}:{99+4*T}], 0')
            cv = lambda i, r: e(f'v_cvt_pk_bf16_f32 v{16+4*r+i}, v{192+8*i+r}, v{196+8*i+r}')
            if self.LD and self.LDR == 2:
                for i in range(12):
                    e(self.dn_read(i))
                w = lambda n: e(f's_waitcnt lgkmcnt({n})')
                w(10); mm(0); e(self.dn_read(12)); e(self.dn_read(13)); w(10); mm(1); e(self.dn_read(14)); e(self.dn_read(15)); w(10); mm(2)
                w(8); mm(3); w(6); mm(4); e('s_nop 0'); cv(0, 0); w(4); mm(5); cv(0, 1); w(2); mm(6)
                cv(1, 0); cv(1, 1); w(0); mm(7); e('s_nop 2'); cv(2, 0); cv(2, 1); e('s_nop 2'); cv(3, 0)
            else:
                e('s_waitcnt lgkmcnt(0)')
                mm(0); mm(1); mm(2); e('s_nop 1'); mm(3); e('s_nop 1'); mm(4); e('s_nop 0'); cv(0, 0); mm(5); cv(0, 1); mm(6)
                cv(1, 0); cv(1, 1); mm(7); e('s_nop 2'); cv(2, 0); cv(2, 1); e('s_nop 2'); cv(3, 0)
            e(f'buffer_store_dwordx4 v[16:19], v11, {WS}, s69 offen sc1')
            cv(3, 1)
            e(f'buffer_store_dwordx4 v[20:23], v11, {WS}, s72 offen sc1')
            self.stamp(7)
            self.ts(8)
            self.fin()
        if self.LD and self.LDR == 3:
            self.fin()
            e('L_bar_fin:')
            e('s_waitcnt vmcnt(0)')
            if self.LDN:
                e(f's_nop {self.LDN - 1}')
            for i in range(16):
                if i == 11:
                    e('s_waitcnt lgkmcnt(4)')
                e(self.dn_read(i))
            e('s_waitcnt lgkmcnt(0)')
            e('s_barrier')
            down_gemm()
        else:
            down_gemm()
            e('L_bar_fin:')
            if self.LD and self.LDR == 2:
                e('s_waitcnt vmcnt(0)')
            e('s_barrier')

def gen(**kw):
    return Gen(**kw).build()


if __name__ == '__main__':
    hdr = open(f'/code/{NAME}.s.ref').read().split('; Override launch')[0]
    out = sys.argv[1] if len(sys.argv) > 1 else f'/code/{NAME}.s'
    kw = {}
    for a in sys.argv[2:]:
        k, v = a.split('=')
        kw[k] = eval(v)
    open(out, 'w').write(hdr + gen(**kw))
```

```python
import sys

NAME = 'adaLN_cond__sliding_block_cached__glu_gated_glu__decode'

WS_MOD = 0x0
WS_BLK = 0x4000
BP = 12288
WS_P1 = 0x100000
WS_X1 = 0x140000
WS_PRG = 0x144000
GAP = WS_P1 - (WS_BLK + 8 * BP)
WS_RACE = 0x148000
WS_P2 = 0x150000
WS_END = WS_P2 + 8 * 65536
WS_STAMP = 0x3000000
L_ML = 0x100
L_CNT = 0x140
L_FLG = 0x144
L_CNT2 = 0x14c
L_RT = 0x148
L_GATE = 0x150
L_ST = 0x000
L_OP = 0x200
L_OB = 0xA00
L_HH = 0xE00
L_BIG = 0x1000
L_RED = L_BIG
L_EXT = 0x11000
L_H2 = L_EXT
L_DN = L_EXT + 8192
RED_W = 8192
RED_PITCH = 272

WS = 's[36:39]'
SA = 's[40:43]'
SB = 's[44:47]'
SC = 's[48:51]'
SD = 's[52:55]'
SE = 's[56:59]'
CAP = 0x100000
DPPF = 'row_mask:0xf bank_mask:0xf'


DOC = """
Written with tools/gen.py (hand-written generator).  One launch, workgroup (b, h) = (id >> 5, id & 31), 8 waves:
  waves 0-3 (S) stream the K and V windows through a register ring: q.K by v_dot2, true-max softmax, p.V by MFMA
  waves 4-7 (H) do the small GEMMs and keep this head's wo rows in registers
Extra roles: id 0-47 mod = silu(c) @ w_mod; 48-111 LN1 + q = h @ wq; 112-143 clear the hand-off slots;
  144-207 reduce the wo partials (x1) and the w_down partials (output); 43 of 208-255 LN2 + a 32-column FFN slice
  (gate/up on the H waves, w_down on the S waves; these weights are read after the workgroup's own stream).
Hand-offs through d_ws: this launch first fills every slot with 0xffffffff (write-through, acknowledged), then raises
  flags in d_debug; writers and readers look at those flags before they touch a slot (the last inboxes are instead
  filled by their reader before it sends the value their writers wait for), and after that every data
  dword is its own flag (write-through stores, cache-bypassing polls), so nothing depends on placement or on what
  d_ws held before.  All spins are bounded.  Loads whose result is dropped only warm L2 for the current launch
  (weights, and the last V tiles of a slower workgroup, found from progress marks written in this launch).
Which of the cleared slots a reader uses is a permutation that all workgroups derive from the same d_debug flags; it
  puts a slot on the memory half its reader reaches faster (probed within the launch) and only affects speed.
"""


class Gen:
    def __init__(self,
                 D=5, D0=4, DS=((0, 4), (32, 5), (90, 6)), D2=7, FU=(40, 30, 50, 30, 0), FN=20, FX=40,
                 FA=56, FU2=(112, 72, 0, 64, 112, 64), WB=(0, 0, 0, 0), WB2=(0, 0, 0, 0), DE=8, JE=124, XC=False,
                 NL=15, budget=15, QS=0, PVC=6, QJ=None, JJ=None,
                 perm=(0, 1, 6, 3, 7, 5, 2, 8, 9, 4), permV=(7, 4, 5, 8, 2, 9), cols=(4, 8, 16, 32, 64, 128, 256, 512),
                 QL=(), DB=None, HP=208, HE=6, HM=(78, 8), HL=12, HN=4, HG=2, HC=1, YR=0, YF=2, F6=(1, 3, 5), GP=2, G0=16, GT=0, GTF=0, GB=0, GS=6, GC=12, TK0=24, TKN=32, TKW=144,
                 HD=3, HDF=3, FD=1, QD=3, PD=2, UD=16, PC=1, JP=0, DD=8, NPRE=0, NS=0, NT=0, downfirst=True, LD=2, LDP=2, LDR=3, LDW=0, LDS_=None, LDQ=7, LDX=1, LDN=0, hprio=2, P0=True, P3='d', prefetch=True,
                 wperm=(1, 2, 3, 4, 5, 6), wcw=(0, 0), wcols=(0,) * 8,
                 kvflags='nt', wflags='', gflags='', fflags='', outflags='sc1', cflags='sc1', pflags='sc1', hpflags='',
                 OA=0, JC=32, pol=None, X4=(0, 0), X2=2, SK=True, NQ=(1, 0, 1), SN=0, XF=2, AL=0, TP=None,
                 modsleep=4, flagsleep=40, PP=(4, 2, 3), PG=(1, 1, 1), PM=(0, 0, 0), PS=(0, 0, 0), PI=(0, 0, 0),
                 diag=0, calib=0, calibwg=None, amp=None, jitter=None, abl='', TB=None):
        self.__dict__.update(locals())
        self.L = []
        self.uid = 0
        self.RG = 62
        if self.DB:
            assert self.HP and self.HM[0] < 64 and self.JJ and self.JJ < self.HM[0] <= self.DB[0] - self.D2
            self.FU2 = (self.JE,) * 6
        if self.permV is None or sorted(self.permV) != sorted(self.perm[4:]):
            self.permV = self.perm[4:]
        self.permV = tuple(self.permV)
        assert not self.LD or self.NL >= 10
        if self.QJ is None:
            self.QJ = self.RG + self.NL - max(self.D, self.D2) - 2

    def e(self, s):
        self.L.append(s)

    def fin(self):
        self.e('s_branch L_fin' if (self.diag or self.amp or self.calib) else 's_endpgm')

    def lab(self, base):
        self.uid += 1
        return f'L_{base}_{self.uid}'

    def srd(self, name, lo, hi, nbytes):
        b = int(name[2:name.index(':')])
        e = self.e
        e(f's_mov_b32 s{b}, {lo}'); e(f's_mov_b32 s{b+1}, {hi}')
        e(f's_mov_b32 s{b+2}, {nbytes:#x}'); e(f's_mov_b32 s{b+3}, 0x20000')

    def ts(self, i):
        if self.diag == 2:
            self.e(f's_memrealtime s[{80+2*i}:{81+2*i}]')

    def stamp(self, i, mode=1):
        if self.amp and mode == 1 and i == self.amp[0]:
            self.e('s_memrealtime s[96:97]')
        if self.diag == mode:
            self.e('s_memrealtime s[78:79]')
            self.e('s_waitcnt lgkmcnt(0)')
            self.e(f's_mov_b32 s{80+i}, s78')

    def rnd(self, d, s):
        self.e(f'v_cvt_pk_bf16_f32 v{d}, 0, v{s}')

    def sent_check(self, regs, t):
        e = self.e
        regs = list(regs)
        if len(regs) == 1:
            e(f'v_cmp_eq_u32 vcc, -1, v{regs[0]}')
            return
        if len(regs) == 2:
            e(f'v_max_u32 v{t}, v{regs[0]}, v{regs[1]}'); rest = []
        else:
            e(f'v_max3_u32 v{t}, v{regs[0]}, v{regs[1]}, v{regs[2]}'); rest = regs[3:]
        while rest:
            if len(rest) >= 2:
                e(f'v_max3_u32 v{t}, v{t}, v{rest[0]}, v{rest[1]}'); rest = rest[2:]
            else:
                e(f'v_max_u32 v{t}, v{t}, v{rest[0]}'); rest = rest[1:]
        e(f'v_cmp_eq_u32 vcc, -1, v{t}')

    def poll(self, issue, wait, check, sleep=0, again=None):
        e = self.e
        lp, lx = self.lab('poll'), self.lab('pollx')
        e('s_mov_b32 s75, 0')
        e(f'{lp}:')
        issue()
        e(wait)
        check()
        e(f's_cbranch_vccz {lx}')
        if again:
            again()
        if sleep:
            e(f's_sleep {sleep}')
        e('s_add_u32 s75, s75, 1'); e(f's_cmp_lt_u32 s75, {CAP * (16 if "lgkm" in wait else 1):#x}'); e(f's_cbranch_scc1 {lp}')
        e(f'{lx}:')

    def ppoll(self, k, load, nld, base, t):
        e = self.e
        P = self.PP[k]
        regs = range(base, base + 4 * nld)
        if self.PI[k]:
            e(f's_sleep {self.PI[k]}')

        def issue():
            for i in range(nld):
                load(i)
        for i in range(P - 1):
            issue()
            e(f's_sleep {self.PG[k]}')
        if self.PM[k] < 2:
            self.poll(issue, f's_waitcnt vmcnt({nld*(P-1)})', lambda: self.sent_check(regs, t), sleep=self.PS[k],
                      again=(lambda: e('s_mov_b64 exec, vcc')) if self.PM[k] else None)
            if self.PM[k]:
                e('s_mov_b64 exec, -1')
            return
        m = lambda i: f's[{4+2*i}:{5+2*i}]'
        for i in range(nld):
            e(f's_mov_b64 {m(i)}, -1')

        def missue():
            for i in range(nld):
                l = self.lab('mk')
                e(f's_mov_b64 exec, {m(i)}')
                if P == 1:
                    e(f's_cbranch_execz {l}')
                load(i)
                e(f'{l}:')
            e('s_mov_b64 exec, -1')

        def mcheck():
            for i in range(nld):
                r = base + 4 * i
                e(f'v_max3_u32 v{t}, v{r}, v{r+1}, v{r+2}'); e(f'v_max_u32 v{t}, v{t}, v{r+3}')
                e(f'v_cmp_eq_u32 {m(i)}, -1, v{t}')
            e(f's_or_b64 vcc, {m(0)}, {m(1)}')
            for i in range(2, nld):
                e(f's_or_b64 vcc, vcc, {m(i)}')
        self.poll(missue, f's_waitcnt vmcnt({nld*(P-1)})', mcheck, sleep=self.PS[k])

    def allreduce_rows(self, op, v, t):
        e = self.e
        e(f'v_mov_b32 v{t}, v{v}'); e('s_nop 1')
        e(f'v_permlane16_swap_b32 v{v}, v{t}'); e('s_nop 1')
        e(f'{op} v{v}, v{v}, v{t}')
        e(f'v_mov_b32 v{t}, v{v}'); e('s_nop 1')
        e(f'v_permlane32_swap_b32 v{v}, v{t}'); e('s_nop 1')
        e(f'{op} v{v}, v{v}, v{t}')

    def build(self):
        e = self.e
        e(f'; @launch grid=(256,1,1) block=(512,1,1) lds={L_EXT + 4096 * max(self.NL, 4)}')
        for l in DOC.strip().split('\n'):
            e('; ' + l)
        e('.amdgcn_target "amdgcn-amd-amdhsa--gfx950"')
        e('.text'); e(f'.globl {NAME}_kernel'); e('.p2align 8'); e(f'.type {NAME}_kernel,@function')
        e(f'{NAME}_kernel:')
        e('L_code_begin:')
        if self.amp:
            e('s_mov_b32 s96, 0')
        if self.diag or self.calib or self.amp or self.TB:
            e('s_memrealtime s[100:101]')
        e('s_load_dwordx16 s[4:19], s[0:1], 0')
        e('s_load_dwordx8 s[20:27], s[0:1], 64')
        e('s_load_dwordx4 s[28:31], s[0:1], 96')
        e('s_cmpk_ge_u32 s2, 256'); e('s_cbranch_scc1 L_end')
        if self.YR:
            n = 32 - self.YF
            e('s_lshr_b32 s66, s2, 3'); e(f's_sub_u32 s67, s66, {self.YF}'); e('s_cbranch_scc1 L_yr')
            e(f's_add_u32 s67, s67, {self.YR}'); e(f's_cmp_ge_u32 s67, {n}'); e(f's_cselect_b32 s68, {n}, 0'); e('s_sub_u32 s67, s67, s68')
            e(f's_add_u32 s67, s67, {self.YF}'); e('s_lshl_b32 s67, s67, 3'); e('s_and_b32 s2, s2, 7'); e('s_or_b32 s2, s2, s67')
            e('L_yr:')
        if self.jitter:
            mul, mask = self.jitter
            e(f's_mul_i32 s64, s2, {mul}'); e('s_lshr_b32 s64, s64, 5'); e(f's_and_b32 s64, s64, {mask}')
            e('L_jit:'); e('s_sub_u32 s64, s64, 1'); e('s_cbranch_scc1 L_jitx'); e('s_sleep 64'); e('s_branch L_jit'); e('L_jitx:')
        e('v_lshrrev_b32 v1, 6, v0')
        e('v_and_b32 v0, 63, v0')
        e('v_readfirstlane_b32 s3, v1')
        e('v_lshlrev_b32 v1, 4, v0')
        if self.diag:
            for i in range(81, 100):
                e(f's_mov_b32 s{i}, 0')
        e('s_lshl_b32 s64, s2, 20'); e('s_add_u32 s64, s64, 0xC0000')
        e('s_mov_b32 s42, 0x40000'); e('s_mov_b32 s43, 0x20000')
        e('s_and_b32 s34, s3, 3')
        e('s_cmp_ge_u32 s3, 4')
        e('s_cbranch_scc1 L_helper')
        self.s_wave(0)
        self.h_wave()
        if 't' in self.abl:
            e('s_branch L_fin')
        self.tail()
        self.fin()
        self.s_wave(1)
        e('L_fin:')
        if self.amp:
            ev, E0, lo, hi = self.amp
            self.stamp(9)
            e('s_waitcnt lgkmcnt(0)')
            e(f's_sub_u32 s94, s3, {lo}'); e(f's_cmp_lt_u32 s94, {hi-lo}'); e('s_cbranch_scc0 L_end')
            e('s_cmp_eq_u32 s96, 0'); e('s_cbranch_scc1 L_end')
            e('s_sub_u32 s96, s96, s100'); e('s_mul_i32 s96, s96, 10'); e(f's_add_u32 s96, s96, {3000 - int(E0*1000)}')
            e('s_min_i32 s96, s96, 30000')
            e('L_amp:'); e('s_sleep 4'); e('s_memrealtime s[94:95]'); e('s_waitcnt lgkmcnt(0)')
            e('s_sub_u32 s94, s94, s100'); e('s_cmp_lt_i32 s94, s96'); e('s_cbranch_scc1 L_amp')
        if self.calib:
            e('s_cmp_eq_u32 s3, 5'); e('s_cbranch_scc0 L_end')
            if self.calibwg is not None:
                e(f's_cmp_eq_u32 s2, {self.calibwg}'); e('s_cbranch_scc0 L_end')
            e('L_cal:'); e('s_memrealtime s[80:81]'); e('s_waitcnt lgkmcnt(0)')
            e('s_sub_u32 s80, s80, s100'); e(f's_cmp_lt_u32 s80, {self.calib*100}'); e('s_cbranch_scc1 L_cal')
        if self.diag:
            e('s_lshl_b32 s64, s2, 3'); e('s_add_u32 s64, s64, s3'); e('s_lshl_b32 s64, s64, 7'); e(f's_add_u32 s64, s64, {WS_STAMP}')
            e('v_lshlrev_b32 v2, 2, v0')
            self.stamp(9)
            if self.diag > 1:
                e('s_memrealtime s[98:99]'); e('s_waitcnt lgkmcnt(0)')
            for i in range(20):
                e(f'v_writelane_b32 v4, s{80+i}, {i}')
            e('s_getreg_b32 s80, hwreg(HW_REG_HW_ID)'); e('s_getreg_b32 s81, hwreg(HW_REG_XCC_ID)')
            e('v_writelane_b32 v4, s80, 20'); e('v_writelane_b32 v4, s81, 21')
            e('s_sleep 127'); e('s_sleep 127')
            e('s_mov_b64 exec, 0x3fffff')
            e(f'buffer_store_dword v4, v2, {WS}, s64 offen')
        e('L_end:')
        e('s_endpgm')
        e('L_code_end:')
        e('.section .rodata,"a"'); e('.p2align 6'); e(f'.amdhsa_kernel {NAME}_kernel')
        e('  .amdhsa_next_free_vgpr 256'); e('  .amdhsa_next_free_sgpr 102'); e('  .amdhsa_accum_offset 256')
        e('  .amdhsa_group_segment_fixed_size 0'); e('  .amdhsa_kernarg_size 112'); e('  .amdhsa_user_sgpr_count 2')
        e('  .amdhsa_user_sgpr_kernarg_segment_ptr 1'); e('  .amdhsa_system_sgpr_workgroup_id_x 1')
        e('  .amdhsa_float_denorm_mode_32 3')
        e('.end_amdhsa_kernel')
        return '\n'.join(self.L) + '\n'

    def s_wave(self, part):
        if part == 1:
            self.L += self.s_rest
            return
        head = self.L
        e = self.e
        D = self.D

        pm = self.perm
        if pm[:2] != (0, 1):
            e('v_and_b32 v1, 0xf0, v1')
            e('v_bfe_u32 v2, v0, 4, 1'); e(f'v_lshl_add_u32 v1, v2, {8+pm[0]}, v1')
            e('v_lshrrev_b32 v2, 5, v0'); e(f'v_lshl_add_u32 v1, v2, {8+pm[1]}, v1')
        if pm[3] == pm[2] + 1:
            e(f's_lshl_b32 s65, s34, {8+pm[2]}')
        else:
            e('s_and_b32 s65, s34, 1'); e(f's_lshl_b32 s65, s65, {8+pm[2]}'); e('s_lshr_b32 s66, s34, 1'); e(f's_lshl_b32 s66, s66, {8+pm[3]}')
            e('s_or_b32 s65, s65, s66')
        self.wg_xor('s65', 's2', 's66')
        koffK = lambda j: sum(((j >> b) & 1) << (8 + pm[4 + b]) for b in range(6))
        koffV = lambda j: sum(((j >> b) & 1) << (8 + self.permV[b]) for b in range(6))
        koff = lambda j: koffK(j) if j < 64 else koffV(j - 64)
        tmap = lambda i: sum(((i >> b) & 1) << pm[4:].index(self.permV[b]) for b in range(6))
        e('s_waitcnt lgkmcnt(0)')
        e('s_add_u32 s40, s6, s64'); e('s_addc_u32 s41, s7, 0')
        e('s_add_u32 s44, s8, s64'); e('s_addc_u32 s45, s9, 0')
        D2 = self.D2 if any(self.FU) else D

        def set_boost(FU, FN, FX, t, WB=(0, 0, 0, 0)):
            e('s_cmp_eq_u32 s74, -1'); e(f's_mov_b32 s69, {FU[3]}'); e(f's_cselect_b32 s69, {FN}, s69')
            e(f's_cmp_lt_u32 s2, {112+self.JC}'); e(f's_cselect_b32 s69, {FU[4]}, s69')
            e('s_cmp_lt_u32 s2, 112'); e(f's_cselect_b32 s69, {FU[2]}, s69')
            e('s_cmp_lt_u32 s2, 48'); e(f's_cselect_b32 s69, {FU[1]}, s69')
            e('s_cmp_lt_u32 s2, 16'); e(f's_cselect_b32 s69, {FU[0]}, s69')
            if FX:
                e(f's_and_b32 {t}, s72, 7'); e(f's_cmp_eq_u32 {t}, 3'); e(f's_cselect_b32 {t}, {FX}, 0')
                e('s_cmp_lt_u32 s2, 112'); e(f's_cselect_b32 {t}, {t}, 0'); e(f's_add_u32 s69, s69, {t}')
            if any(WB):
                e(f's_lshl_b32 {t}, s34, 3'); e(f's_lshr_b32 {t}, {sum(w << (8 * i) for i, w in enumerate(WB)):#x}, {t}'); e(f's_and_b32 {t}, {t}, 0xff')
                e(f's_max_u32 s69, s69, {t}')

        def late_setup():
            self.common()
            e('s_mov_b32 s46, 0x40000'); e('s_mov_b32 s47, 0x20000')
            if D2 != D:
                set_boost(self.FU, self.FN, self.FX, 's66', self.WB)
        RG = self.RG
        free = [8 + 4 * i for i in range(RG)]
        slot = {}
        Q = 4
        sc = [None] * 16
        st = {}

        def q_load():
            e(f's_mul_i32 s68, s32, {BP}'); e('s_lshl_b32 s67, s33, 8'); e('s_add_u32 s68, s68, s67'); e(f's_add_u32 s68, s68, {WS_BLK}')
            e('v_and_b32 v2, 0xf0, v1')
            e(f'buffer_load_dwordx4 v[4:7], v2, {WS}, s68 offen sc1')

        def j_load(fl):
            e(f'v_and_b32 v2, {self.JC-1}, v0'); e('v_lshlrev_b32 v2, 2, v2')
            e(f'buffer_load_dword v3, v2, {SD}, 0 offen offset:128 {fl}')

        def j_check():
            l = self.lab('jf')
            e('v_cmp_eq_u32 vcc, 0, v3'); e(f's_cbranch_vccz {l}')
            self.poll(lambda: j_load('sc1'), 's_waitcnt vmcnt(0)', lambda: e('v_cmp_eq_u32 vcc, 0, v3'), sleep=self.flagsleep)
            e(f'{l}:')

        def w_q():
            self.stamp(1)
            l = self.lab('q')
            self.sent_check(range(4, 8), 2 if self.DB else 3)
            e(f's_cbranch_vccz {l}')
            if 'q' in self.abl or 'e' in self.abl:
                e(f's_branch {l}')
            self.poll(q_load, 's_waitcnt vmcnt(0)', lambda: self.sent_check(range(4, 8), 2 if self.DB else 3))
            e(f'{l}:')
            e('s_mov_b32 s66, 0x3db504f3')
            self.stamp(2)

        inlds = {}

        def fetch(tiles):
            n = 0
            for i in tiles:
                if i in inlds:
                    if 'LA' not in st:
                        st['LA'] = free.pop(0)
                        e(f'v_lshl_add_u32 v{st["LA"]}, v0, 4, s70')
                    r = free.pop(0)
                    slot[i] = r
                    e(f'ds_read_b128 v[{r}:{r+3}], v{st["LA"]} offset:{1024*inlds.pop(i)}')
                    n += 1
            if n:
                e('s_waitcnt lgkmcnt(0)')

        def w_qk(G, part=None):
            if part != 1:
                fetch(range(4 * G, 4 * G + 4))
            K = [slot[4 * G + t] for t in range(4)]
            if G == 0 and part != 1:
                regs = [K[t] + d for t in range(4) for d in range(4)]
                regs.remove(K[2] + 1)
                order = [K[2] + 1] + regs
                for i in range(16):
                    sc[i] = order[i]
            u = sc[G]
            for d in ((0, 1, 2, 3) if part is None else (0, 1) if part == 0 else (2, 3)):
                for t in range(4):
                    if d == 0:
                        e(f'v_dot2_f32_bf16 v{K[t]}, v{K[t]}, v{Q}, 0')
                    else:
                        e(f'v_dot2c_f32_bf16 v{K[t]}, v{K[t]+d}, v{Q+d}')
            if part == 0:
                return
            T0, T1 = K[0] + 1, K[1] + 1
            e(f'v_add_f32_dpp v{T0}, v{K[0]}, v{K[0]} row_ror:8 row_mask:0xf bank_mask:0x3')
            e(f'v_add_f32_dpp v{T1}, v{K[1]}, v{K[1]} row_ror:8 row_mask:0xf bank_mask:0x3')
            e(f'v_add_f32_dpp v{T0}, v{K[2]}, v{K[2]} row_ror:8 row_mask:0xf bank_mask:0xc')
            e(f'v_add_f32_dpp v{T1}, v{K[3]}, v{K[3]} row_ror:8 row_mask:0xf bank_mask:0xc')
            e('s_nop 0')
            e(f'v_add_f32_dpp v{u}, v{T0}, v{T0} row_shl:4 row_mask:0xf bank_mask:0x5')
            e(f'v_add_f32_dpp v{u}, v{T1}, v{T1} row_shr:4 row_mask:0xf bank_mask:0xa')
            e('s_nop 1')
            e(f'v_add_f32_dpp v{u}, v{u}, v{u} quad_perm:[1,0,3,2] {DPPF}')
            e('s_nop 1')
            e(f'v_add_f32_dpp v{u}, v{u}, v{u} quad_perm:[2,3,0,1] {DPPF}')
            self.rnd(u, u)
            e(f'v_mul_f32 v{u}, s66, v{u}')
            self.rnd(u, u)
            if G > 0:
                free.extend(K)

        def w_sm1():
            st['T'] = [free.pop(0) for _ in range(5)]
            e(f'v_max3_f32 v2, v{sc[0]}, v{sc[1]}, v{sc[2]}')
            for i in range(3, 15, 2):
                e(f'v_max3_f32 v2, v2, v{sc[i]}, v{sc[i+1]}')
            e(f'v_max_f32 v2, v2, v{sc[15]}')
            e('v_max_f32 v2, 0xff7fffff, v2')
            e('s_nop 1')
            e(f'v_max_f32_dpp v2, v2, v2 row_ror:4 {DPPF}'); e('s_nop 1')
            e(f'v_max_f32_dpp v2, v2, v2 row_ror:8 {DPPF}')
            self.allreduce_rows('v_max_f32', 2, 3)
            e('s_mov_b32 s67, 0x3fb8aa3b')
            for i in range(16):
                e(f'v_sub_f32 v{sc[i]}, v{sc[i]}, v2')
            for i in range(16):
                e(f'v_mul_f32 v{sc[i]}, s67, v{sc[i]}')

        def w_sm2():
            t = st['T'][0]
            for i in range(16):
                e(f'v_exp_f32 v{sc[i]}, v{sc[i]}')
            e(f'v_add_f32 v3, v{sc[0]}, v{sc[1]}')
            for i in range(2, 16):
                e(f'v_add_f32 v3, v3, v{sc[i]}')
            e('s_nop 1')
            e(f'v_add_f32_dpp v3, v3, v3 row_ror:4 {DPPF}'); e('s_nop 1')
            e(f'v_add_f32_dpp v3, v3, v3 row_ror:8 {DPPF}')
            self.allreduce_rows('v_add_f32', 3, t)
            e('v_min_u32 v3, -2, v3')
            e('s_lshl_b32 s68, s34, 3'); e(f'v_mov_b32 v{t}, s68')
            e(f'ds_write_b64 v{t}, v[2:3] offset:{L_ML}')
            e(f'v_and_b32 v{t+1}, 15, v0'); e(f'v_lshrrev_b32 v{t+2}, 1, v{t+1}')
            e(f'v_and_b32 v{t+1}, 1, v0'); e(f'v_lshlrev_b32 v{t+1}, 4, v{t+1}')
            e(f'v_mov_b32 v{t+3}, 0xffff'); e(f'v_lshlrev_b32 v{t+1}, v{t+1}, v{t+3}')
            for j in range(4):
                e(f'v_cmp_eq_u32 vcc, {j}, v{t+2}'); e('s_nop 1'); e(f'v_cndmask_b32 v{4+j}, 0, v{t+1}, vcc')

        def w_sm3():
            a, b, t = st['T'][1], st['T'][2], st['T'][0]
            e(f'v_mov_b32 v{t}, 0')

            def issue():
                e(f'ds_read_b128 v[{a}:{a+3}], v{t} offset:{L_ML}')
                e(f'ds_read_b128 v[{b}:{b+3}], v{t} offset:{L_ML+16}')
            if 'k' not in self.abl:
                self.poll(issue, 's_waitcnt lgkmcnt(0)', lambda: self.sent_check([a + 1, a + 3, b + 1, b + 3], t + 1))
            M = t + 1
            e(f'v_max3_f32 v{M}, v{a}, v{a+2}, v{b}'); e(f'v_max_f32 v{M}, v{M}, v{b+2}')
            ms = [a, a + 2, b, b + 2, 2]
            for m in ms:
                e(f'v_sub_f32 v{m}, v{m}, v{M}')
            for m in ms:
                e(f'v_mul_f32 v{m}, s67, v{m}')
            for m in ms:
                e(f'v_exp_f32 v{m}, v{m}')
            e(f'v_mul_f32 v3, v{a}, v{a+1}')
            for m in ms[1:4]:
                e(f'v_fmac_f32 v3, v{m}, v{m+1}')
            e('v_rcp_f32 v3, v3'); e('s_nop 0')
            e('v_mul_f32 v2, v2, v3')
            for i in range(16):
                e(f'v_mul_f32 v{sc[i]}, v{sc[i]}, v2')
            for i in range(16):
                e(f'v_cvt_pk_bf16_f32 v{sc[i]}, v{sc[i]}, v{sc[i]}')
            e('s_nop 1')
            st['acc'] = st['T'][3]
            self.stamp(3)

        def pv_prep(i):
            k = i - 64
            A = st['T'][1 + (k & 1)]
            t = tmap(k)
            for j in range(4):
                e(f'v_and_b32_dpp v{A+j}, v{sc[t>>2]}, v{4+j} row_newbcast:{4*(t&3)} {DPPF}')

        def w_pv(i):
            k = i - 64
            A = st['T'][1 + (k & 1)]
            acc = st['acc']
            if i in inlds:
                fetch([t for t in range(i, i + 8) if t <= st['landed']])
            if k == 0:
                pv_prep(i)
            if i < 127:
                pv_prep(i + 1)
            V = slot[i]
            c = '0' if k == 0 else f'v[{acc}:{acc+3}]'
            st['pv_mfma'] = f'v_mfma_f32_16x16x32_bf16 v[{acc}:{acc+3}], v[{A}:{A+3}], v[{V}:{V+3}], {c}'
            e(st['pv_mfma'])
            free.append(V)

        work = [(-1, 0, w_q)]
        if self.QS:
            for G in range(16):
                if G < self.QS:
                    work += [(4 * G + 3, 30, (lambda G=G: w_qk(G)))]
                else:
                    work += [(4 * G + 3, 15, (lambda G=G: w_qk(G, 0))), (4 * G + 3, 15, (lambda G=G: w_qk(G, 1)))]
        else:
            work += [(4 * G + 3, 30, (lambda G=G: w_qk(G))) for G in range(16)]
        work += [(-1, 60, w_sm1), (-1, 70, w_sm2), (-1, 60, w_sm3)]
        work += [(i, self.PVC, (lambda i=i: w_pv(i))) for i in range(64, 128)]
        started = False
        JJ = self.JJ or self.QJ
        for j in range(128):
            landed = st.get('landed', -1)
            tolds = RG <= j < RG + self.NL
            st['landed'] = landed
            while not free and not tolds:
                started = True
                need, cost, fn = work.pop(0)
                assert need <= landed, (j, need)
                fn()
            D0 = self.D0 or D
            lo = D
            for j0, d0 in self.DS:
                if j >= j0:
                    lo = d0
            Dj = max(D2, lo) if (j < max(max(self.FU) + self.FX, max(self.FU2), max(self.WB), max(self.WB2), max([0] + [b for a, b in self.QL]))) else lo
            if j >= self.JE:
                Dj = lo = self.DE
            assert Dj <= D2 or j >= RG + self.NL
            if self.HP and self.HE and j == 128 - self.HE:
                st['hp'] = [r for r in free if r >= 96][:3]
                assert len(st['hp']) == 3
                for r in st['hp']:
                    free.remove(r)
                l = self.lab('hp')
                e(f's_cmp_lt_u32 s2, {self.HP}'); e(f's_cbranch_scc0 {l}')
                self.help_look(st['hp'][0]); e(f'{l}:')
            if self.FA and j == self.FA and not self.TB and not self.DB:
                set_boost(self.FU2[:5], self.FU2[5], 0, 's71', self.WB2)
                if any(a + D2 < self.FA for a, b in self.QL):
                    e('s_max_u32 s69, s69, s61')
            if self.TB and j in self.TB:
                e('s_memrealtime s[60:61]'); e('s_waitcnt lgkmcnt(0)'); e('s_sub_u32 s60, s60, s100')
                e(f's_cmp_gt_u32 s60, {int(self.TB[j] * 100)}'); e('s_cselect_b32 s69, 255, 0')
            waits = []
            xj = [] if 'j' in self.abl or not self.XC else [JJ - D2 - 2, self.QJ]
            if self.DB:
                xj = xj + [c - D2 for c in range(self.DB[0], self.DB[1], self.DB[2])]
            xj = xj + [a for a, b in self.QL]
            cnt = lambda d: d - 1 + sum(1 for x in xj if j - d < x <= j)
            if j >= D0:
                if Dj != lo:
                    waits.append(f's_cmpk_gt_u32 s69, {j}')
                if j >= Dj:
                    waits.append(f's_waitcnt vmcnt({cnt(Dj)})')
                if Dj != lo:
                    l = self.lab('d')
                    waits += [f's_cbranch_scc1 {l}', f's_waitcnt vmcnt({cnt(lo)})', f'{l}:']
            else:
                Dj = 999
            if j == JJ - D2 - 2 and 'j' not in self.abl:
                j_load('')
            if j == JJ and 'j' not in self.abl:
                j_check()
            if self.HP and j == self.HM[0]:
                e('s_and_b32 s62, s2, 7'); e('s_lshl_b32 s62, s62, 9'); e(f's_add_u32 s62, s62, {WS_PRG}')
                e('s_lshr_b32 s63, s2, 3'); e('s_lshl_b32 s63, s63, 2'); e('s_add_u32 s63, s63, s62')
            for on, M, hi, off in ((self.HP, self.HM, 128, 0),):
                if on and M[0] <= j < hi and (j - M[0]) % M[1] == 0:
                    if j >= 84 and 'mk' not in st:
                        st['mk'] = free.pop(0)
                    mk = st['mk'] if j >= 84 else 2
                    self.if_w((j - M[0]) // M[1] % 4, lambda: (e(f'v_mov_b32 v{mk}, {j if M[0] < 64 else j & 63}'), e('s_mov_b64 exec, 1'),
                                                             e(f'buffer_store_dword v{mk}, off, {WS}, s63 offset:{off}'), e('s_mov_b64 exec, -1')))
            if self.DB and j + D2 in range(self.DB[0], self.DB[1], self.DB[2]):
                if j >= 80 and 'lk' not in st:
                    st['lk'] = free.pop(0)
                a, d = (st['lk'], st['lk'] + 1) if j >= 80 else (2, 3)
                e(f'v_and_b32 v{a}, 31, v0'); e(f'v_lshlrev_b32 v{a}, 2, v{a}')
                e(f'buffer_load_dword v{d}, v{a}, {WS}, s62 offen sc1')
                st['look'] = (j, d)
            for a, b in self.QL:
                if j == a:
                    assert JJ < a and a + D2 < self.QJ
                    if a == min(x for x, y in self.QL):
                        e('s_mov_b32 s61, 0')
                    q_load()
            if j == self.QJ and 'j' not in self.abl:
                assert j + D2 + 1 < RG + self.NL <= self.JE
                q_load()
            if j % 8 == 0 and j:
                self.stamp(j // 8, 3)
            if j == 0:
                self.stamp(11)
            if j == D:
                self.stamp(12)
            if j == 2 * D:
                self.stamp(13)
            srd = SA if j < 64 else SB
            so = 's65'
            if tolds:
                if j == RG:
                    e(f's_mul_i32 s70, s34, {1024*self.NL}'); e(f's_add_u32 s70, s70, {L_EXT}')
                inlds[j] = j - RG
                e(f's_add_u32 m0, s70, {(j-RG)*1024}')
            if koff(j) or tolds:
                so = 's64'
                e(f's_xor_b32 s64, s65, {koff(j)}')
            for x in waits:
                e(x)
            if tolds:
                e(f'buffer_load_dwordx4 v1, {srd}, {so} offen {self.kvflags} lds')
            else:
                r = free.pop(0)
                slot[j] = r
                e(f'buffer_load_dwordx4 v[{r}:{r+3}], v1, {srd}, {so} offen {self.kvflags}')
            for a, b in self.QL:
                if j == a + D2:
                    l = self.lab('ql')
                    self.sent_check(range(4, 8), 2)
                    e(f's_cbranch_vccnz {l}'); e(f's_max_u32 s61, s61, {b}'); e('s_max_u32 s69, s69, s61'); e(f'{l}:')
            if self.DB and j in range(self.DB[0], self.DB[1], self.DB[2]):
                jl, d = st.pop('look')
                assert j - jl == D2
                e(f'v_add_u32 v{d}, 1, v{d}'); e(f'v_cmp_le_u32 vcc, {jl + self.DB[3] + 1}, v{d}')
                e('s_bcnt1_i32_b32 s71, vcc_lo'); e(f's_cmp_ge_u32 s71, {self.DB[4]}'); e('s_cselect_b32 s69, 255, 0')
            if j == D0 - 1:
                e('s_barrier')
                if self.SN:
                    late_setup()
            if j == D0 - 1 + self.SN:
                e('s_branch L_srest')
                self.L = []
                e('; ---- stream waves, main part'); e('L_srest:')
                if not self.SN:
                    late_setup()
            landed = max(landed, j - Dj)
            st['landed'] = landed
            budget = self.budget
            while started and work and work[0][0] <= landed and budget > 0:
                need, cost, fn = work.pop(0)
                fn()
                budget -= cost
        def drain(extra):
            for need, cost, fn in work:
                e(f's_waitcnt vmcnt({127-need+extra})')
                st['landed'] = need
                if need == 127:
                    self.ts(1)
                    self.stamp(16, 3)
                fn()
        assert not inlds and all(w[0] > 64 for w in work)
        gr = None
        if self.GP >= 3:
            gr = [free.pop(), free.pop()]

        def gdrain(extra):
            if self.GP == 4:
                l = self.lab('ng')
                n = self.gp_s(gr, l)
                drain(extra + n)
                e('s_branch L_drained')
                e(f'{l}:')
            drain(extra)

        def ending(x, tag):
            if self.HP and self.HE:
                e(f's_cmp_lt_u32 s2, {self.HP}'); e(f's_cbranch_scc0 L_nohelp{tag}')
                self.help_prep(*st['hp'])
                e(f's_waitcnt vmcnt({self.HE + x})')
                self.help_go(*st['hp'], f'L_drain{tag}', 's8', 's9', self.HM, self.HL, self.HG, 0)
                gdrain(self.HN + 1 + x)
                e('s_branch L_drained')
                e(f'L_nohelp{tag}:')
            if self.NS:
                e('s_cmp_eq_u32 s74, -1'); e(f's_cbranch_scc1 L_drain{tag}')
                self.ffn_slab(self.NPRE, self.NPRE + self.NS, 16, st['T'][4])
                drain(x + (0 if 'f' in self.abl else self.NS))
                e('s_branch L_drained')
            e(f'L_drain{tag}:')
            gdrain(x)
        if self.GP == 3:
            n = self.gp_s(gr, 'L_nogp3')
            ending(n, 'g')
            e('s_branch L_drained')
            e('L_nogp3:')
        ending(0, '')
        e('L_drained:')
        acc = st['acc']
        if self.OA:
            e('v_bfe_u32 v3, v0, 1, 3'); e('v_lshlrev_b32 v3, 6, v3'); e('v_and_b32 v2, 1, v0'); e('v_lshl_add_u32 v3, v2, 4, v3')
            e('v_bfe_u32 v2, v0, 4, 1'); e('v_lshl_add_u32 v2, v2, 3, v3')
            e('s_mov_b32 exec_hi, 0')
            e('s_nop 1')
            for r in range(4):
                e(f'ds_add_f32 v2, v{acc+r} offset:{L_OP + 32*(r>>1) + 4*(r&1)}')
        else:
            e('v_and_b32 v2, 15, v0'); e('v_lshlrev_b32 v2, 5, v2'); e('v_and_b32 v3, 16, v0'); e('v_add_u32 v2, v2, v3')
            e('s_lshl_b32 s68, s34, 9'); e('v_add_u32 v2, s68, v2')
            e('s_mov_b32 exec_hi, 0')
            e('s_nop 1')
            e(f'ds_write_b128 v2, v[{acc}:{acc+3}] offset:{L_OP}')
        e('s_mov_b32 exec_hi, -1')
        if self.GT == 63 or self.GTF == 63:
            self.if_w(0, lambda: (e('v_mov_b32 v3, 63'), e('s_mov_b64 exec, 1'), e(f'buffer_store_dword v3, off, {WS}, s63'), e('s_mov_b64 exec, -1')))
        e('v_lshlrev_b32 v1, 4, v0')
        e('s_waitcnt lgkmcnt(0)')
        self.stamp(4)
        self.ts(2)
        e('s_barrier')
        if self.GP == 1:
            self.gp()
        e('v_mov_b32 v2, 0'); e(f'ds_read_b32 v3, v2 offset:{L_RT}'); e('s_waitcnt lgkmcnt(0)'); e('v_readfirstlane_b32 s35, v3')
        if self.HP and not self.HE:
            e(f's_cmp_lt_u32 s2, {self.HP}'); e('s_cbranch_scc1 L_help')
        e('s_branch L_fin' if 't' in self.abl else 's_branch L_tail_s')
        if self.HP and not self.HE:
            e('L_help:')
            self.help_look(8); self.help_prep(8, 12, 16); e('s_waitcnt vmcnt(0)'); self.help_go(8, 12, 16, 'L_fin', 's8', 's9', self.HM, self.HL, self.HG, 0)
        if 's' in self.abl:
            self.L = [x for x in self.L if not x.startswith(('v_dot', 'v_add_f32_dpp', 'v_and_b32_dpp', 'v_mfma', 'v_cvt_pk', 'v_exp', 'v_mul_f32', 'v_sub_f32', 's_nop') + (('v_', 'ds_') if 'S' in self.abl else ()))]
        self.s_rest = self.L
        self.L = head

    def f_first(self, dst, x, t):
        e = self.e
        if self.F6 == (0, 1, 2):
            e(f's_min_u32 {dst}, {x}, 3')
        else:
            e(f's_lshl_b32 {dst}, 1, {x}'); e(f's_sub_u32 {dst}, {dst}, 1'); e(f's_and_b32 {dst}, {dst}, {sum(1 << g for g in self.F6)}')
            e(f's_bcnt1_i32_b32 {dst}, {dst}')
        e(f's_mul_i32 {t}, {x}, 5'); e(f's_add_u32 {dst}, {dst}, {t}')

    def f_six(self, x):
        if self.F6 == (0, 1, 2):
            self.e(f's_cmp_lt_u32 {x}, 3')
        else:
            self.e(f's_bitcmp1_b32 {sum(1 << g for g in self.F6)}, {x}')

    def wg_xor(self, dst, wg, t):
        e = self.e
        pm = self.perm
        keep = 0x3ff & ~((1 << pm[0]) | (1 << pm[1]))
        groups = {}
        for b, c in enumerate(self.cols):
            for k in range(10):
                if (c & keep) >> k & 1:
                    groups.setdefault(k - b, []).append(b)
        for sh, bits in groups.items():
            if len(bits) == 8:
                e(f's_lshl_b32 {t}, {wg}, {8+sh}')
            else:
                e(f's_and_b32 {t}, {wg}, {sum(1 << b for b in bits)}'); e(f's_lshl_b32 {t}, {t}, {8+sh}')
            e(f's_xor_b32 {dst}, {dst}, {t}')

    def help_look(self, A, off=0):
        e = self.e
        e(f'v_lshlrev_b32 v{A}, 2, v0')
        e(f'buffer_load_dword v{A+1}, v{A}, {WS}, s62 offen offset:{off} sc1')

    def help_prep(self, A, B, C):
        e = self.e
        assert self.perm[:2] == (0, 1) and self.HN <= 4
        for k in range(self.HN):
            e(f'v_lshrrev_b32 v{C+k}, 3, v0'); e(f'v_sub_u32 v{C+k}, {63-8*k}, v{C+k}')
            e(f'v_and_b32 v{B+k}, 7, v0'); e(f'v_lshlrev_b32 v{B+k}, 7, v{B+k}')
            for b in range(6):
                e(f'v_bfe_u32 v{A+2}, v{C+k}, {b}, 1'); e(f'v_lshl_or_b32 v{B+k}, v{A+2}, {8+self.permV[b]}, v{B+k}')
        e('s_lshr_b32 s71, s2, 3')
        e(f'v_subrev_u32 v{A+3}, s71, v0'); e(f'v_and_b32 v{A+3}, 31, v{A+3}')

    def help_go(self, A, B, C, none, lo, hi, M, L, G, off):
        e = self.e
        m, c = A + 1, A + 2
        e(f'v_mov_b32 v{c}, v{m}'); e('s_nop 1'); e(f'v_permlane32_swap_b32 v{m}, v{c}')
        if M[0] < 64:
            e(f'v_add_u32 v{m}, 1, v{m}'); e(f'v_max_u32 v{m}, 64, v{m}'); e(f'v_subrev_u32 v{m}, 64, v{m}')
        else:
            e(f'v_add_u32 v{m}, 1, v{m}'); e(f'v_max_u32 v{m}, {(M[0] & 63) - M[1] + 1}, v{m}')
        e(f'v_cmp_eq_u32 vcc, -1, v{c}'); e(f'v_mov_b32 v{A}, 0xff'); e('s_nop 0'); e(f'v_cndmask_b32 v{m}, v{A}, v{m}, vcc')
        e(f'v_lshl_or_b32 v{m}, v{m}, 5, v{A+3}'); e('s_nop 1')
        for dpp in ['quad_perm:[1,0,3,2]', 'quad_perm:[2,3,0,1]', 'row_ror:4', 'row_ror:8']:
            e(f'v_min_u32_dpp v{m}, v{m}, v{m} {dpp} {DPPF}'); e('s_nop 1')
        e(f'v_readlane_b32 s76, v{m}, 0'); e(f'v_readlane_b32 s66, v{m}, 16'); e('s_min_u32 s76, s76, s66')
        e('s_lshr_b32 s66, s76, 5'); e(f's_cmp_lt_u32 s66, {64 - L - G}'); e(f's_cbranch_scc0 {none}')
        self.srd(SC, lo, hi, 1 << 28)
        e('s_lshr_b32 s64, s2, 3'); e('s_add_u32 s76, s76, s64'); e('s_and_b32 s76, s76, 31')
        e('s_lshl_b32 s67, s76, 2'); e('s_add_u32 s67, s67, s62')
        e('s_lshl_b32 s76, s76, 3'); e('s_and_b32 s64, s2, 7'); e('s_or_b32 s76, s76, s64')
        if self.perm[3] == self.perm[2] + 1:
            e(f's_lshl_b32 s64, s34, {8+self.perm[2]}')
        else:
            e('s_and_b32 s64, s34, 1'); e(f's_lshl_b32 s64, s64, {8+self.perm[2]}'); e('s_lshr_b32 s71, s34, 1'); e(f's_lshl_b32 s71, s71, {8+self.perm[3]}')
            e('s_or_b32 s64, s64, s71')
        self.wg_xor('s64', 's76', 's71')
        e('s_or_b32 s64, s64, 0xC0000'); e('s_lshl_b32 s76, s76, 20'); e('s_xor_b32 s76, s76, s64')
        e(f's_add_u32 s66, s66, {L - 1}')
        for k in range(self.HN - 1, -1, -1):
            e(f'v_xor_b32 v{B+k}, s76, v{B+k}')
            e(f'v_cmp_lt_u32 vcc, s66, v{C+k}'); e('s_or_b64 exec, vcc, 1')
            e(f'buffer_load_dword v{B+2+k if self.HN <= 2 else A}, v{B+k}, {SC}, 0 offen {self.hpflags}')
            e('s_mov_b64 exec, -1')
        e('s_mov_b64 exec, 1'); e(f'buffer_store_dword v1, off, {WS}, s67 offset:{off+128}'); e('s_mov_b64 exec, -1')

    def make_table(self):
        e = self.e
        l = self.lab('tab')
        e('v_cmp_eq_u32 vcc, 0, v25'); e(f's_cbranch_vccz {l}')
        self.poll(lambda: e(f'buffer_load_dword v25, v24, {SD}, 0 offen offset:128 sc1'), 's_waitcnt vmcnt(0)',
                  lambda: e('v_cmp_eq_u32 vcc, 0, v25'), sleep=self.flagsleep)
        e(f'{l}:')
        e('v_bfe_u32 v26, v25, 8, 3'); e('v_lshrrev_b32 v25, 16, v25'); e('s_nop 0')
        for dpp in ['quad_perm:[1,0,3,2]', 'quad_perm:[2,3,0,1]', 'row_ror:4', 'row_ror:8']:
            e(f'v_add_u32_dpp v26, v26, v26 {dpp} {DPPF}'); e('s_nop 1')
        e('v_readlane_b32 s66, v26, 0'); e('v_readlane_b32 s71, v26, 16'); e('s_add_u32 s66, s66, s71'); e('s_cmp_gt_u32 s66, 64'); e('s_cselect_b32 s66, 1, 0')
        if self.pol is not None:
            e(f's_mov_b32 s66, {self.pol}')
        e('v_cmp_ne_u32 vcc, s66, v25'); e('s_and_b32 s71, vcc_lo, 0xff'); e('s_bcnt0_i32_b32 s66, s71'); e('s_sub_u32 s66, s66, 24')
        e('v_mbcnt_lo_u32_b32 v24, s71, 0'); e('v_sub_u32 v25, v0, v24'); e('v_add_u32 v24, s66, v24'); e('v_cndmask_b32 v24, v25, v24, vcc')
        e('v_bfe_u32 v25, v24, 1, 2'); e('v_and_b32 v26, 1, v24'); e('v_lshl_or_b32 v25, v26, 2, v25')
        e('v_lshlrev_b32 v25, v2, v25'); e('s_nop 1')
        for dpp in ['quad_perm:[1,0,3,2]', 'quad_perm:[2,3,0,1]', 'row_shl:4']:
            e(f'v_or_b32_dpp v25, v25, v25 {dpp} {DPPF}'); e('s_nop 1')
        e('v_readfirstlane_b32 s35, v25')
        e('s_mov_b64 exec, 1'); e(f'ds_write_b32 v2, v25 offset:{L_RT}'); e('s_mov_b64 exec, -1')

    def gate(self, thr, r):
        e = self.e
        lw, ld = self.lab('gw'), self.lab('gd')
        e(f'v_mov_b32 v{r+2}, 0')
        e('s_cmp_eq_u32 s34, 0'); e(f's_cbranch_scc0 {lw}')
        e('s_and_b32 s71, s2, 7'); e('s_lshl_b32 s71, s71, 9'); e(f's_add_u32 s71, s71, {WS_PRG}')
        e(f'v_and_b32 v{r}, 31, v0'); e(f'v_lshlrev_b32 v{r}, 2, v{r}')
        lp, lx = self.lab('gp'), self.lab('gx')
        e('s_mov_b32 s75, 0')
        e(f'{lp}:')
        e(f'buffer_load_dword v{r+1}, v{r}, {WS}, s71 offen sc1')
        e('s_waitcnt vmcnt(0)')
        e(f'v_add_u32 v{r+1}, 1, v{r+1}'); e(f'v_cmp_gt_u32 vcc, {thr + 1}, v{r+1}')
        e(f's_cbranch_vccz {lx}')
        e(f's_sleep {self.GS}')
        e('s_add_u32 s75, s75, 1'); e(f's_cmp_lt_u32 s75, {self.GC}'); e(f's_cbranch_scc1 {lp}')
        e(f'{lx}:')
        e(f'v_mov_b32 v{r+1}, 1'); e(f'ds_write_b32 v{r+2}, v{r+1} offset:{L_GATE}')
        e(f's_branch {ld}')
        e(f'{lw}:')
        self.poll(lambda: e(f'ds_read_b32 v{r+1}, v{r+2} offset:{L_GATE}'), 's_waitcnt lgkmcnt(0)', lambda: e(f'v_cmp_eq_u32 vcc, 0, v{r+1}'), sleep=1)
        e(f'{ld}:')

    def gp(self):
        e = self.e
        r = 8
        e(f's_sub_u32 s67, s2, {self.G0}'); e('s_cmp_lt_u32 s67, 128'); e('s_cbranch_scc0 L_nogp')
        if self.GT:
            self.gate(self.GT, 28)
        e('s_and_b32 s66, s2, 7'); self.f_first('s64', 's66', 's71')
        self.f_six('s66'); e('s_cselect_b32 s66, 5, 4')
        e(f'v_and_b32 v{r}, 7, v0'); e(f'v_min_u32 v{r}, s66, v{r}'); e(f'v_add_u32 v{r}, s64, v{r}')
        e('s_and_b32 s64, s67, 0xf8'); e('s_lshl_b32 s64, s64, 2'); e('s_lshl_b32 s66, s34, 3'); e('s_add_u32 s64, s64, s66')
        e(f'v_lshrrev_b32 v{r+1}, 3, v0'); e(f'v_add_u32 v{r+1}, s64, v{r+1}'); e(f'v_mul_u32_u24 v{r+1}, 2752, v{r+1}')
        e(f'v_lshl_add_u32 v{r}, v{r}, 6, v{r+1}')
        if self.LD and self.LDP == 1:
            self.gp_down(r + 4)
        e(f'global_load_dword v{r+2}, v{r}, s[16:17]'); e(f'global_load_dword v{r+3}, v{r}, s[18:19]')
        if self.GB:
            e(f's_mov_b32 s64, {256*2752}'); e('s_bitcmp1_b32 s67, 6'); e(f's_cselect_b32 s64, {(-256*2752) & 0xffffffff}, s64')
            e(f'v_add_u32 v{r}, s64, v{r}')
            e(f'global_load_dword v{r+2}, v{r}, s[16:17]'); e(f'global_load_dword v{r+3}, v{r}, s[18:19]')
        if self.LD and self.LDP == 2:
            self.gp_down(r + 4)
        self.fin()
        e('L_nogp:')

    def gp_ticket(self):
        e = self.e
        r = 8
        n = self.TKN
        e(f's_cmp_lt_u32 s2, {self.TKW}'); e('s_cbranch_scc0 L_nogp')
        e('s_and_b32 s66, s2, 7'); self.f_first('s64', 's66', 's71')
        self.f_six('s66'); e('s_cselect_b32 s66, 5, 4')
        e(f'v_and_b32 v{r}, 7, v0'); e(f'v_min_u32 v{r}, s66, v{r}'); e(f'v_add_u32 v{r}, s64, v{r}')
        e(f'v_lshrrev_b32 v{r+1}, 3, v0')
        e('s_waitcnt vmcnt(1)')
        e('v_readfirstlane_b32 s67, v28')
        e(f's_sub_u32 s67, s67, {self.TK0 - 1}'); e(f's_cmp_lt_u32 s67, {n}'); e('s_cbranch_scc0 L_fin')
        e(f's_mul_i32 s71, s67, {512 // n}')
        e(f'v_add_u32 v{r+1}, s71, v{r+1}'); e(f'v_mul_u32_u24 v{r+1}, 2752, v{r+1}')
        e(f'v_lshl_add_u32 v{r}, v{r}, 6, v{r+1}')
        def down():
            k = 1536 // n
            e('s_add_u32 s66, s66, 1'); e('s_lshl_b32 s66, s66, 8'); e('s_sub_u32 s66, s66, 1')
            e(f's_mul_i32 s71, s67, {k}')
            e(f'v_min_u32 v{r+4}, {k-1}, v0'); e(f'v_add_u32 v{r+4}, s71, v{r+4}'); e(f'v_min_u32 v{r+4}, s66, v{r+4}')
            e('s_lshl_b32 s64, s64, 15'); e(f'v_lshl_add_u32 v{r+4}, v{r+4}, 7, s64')
            e(f'global_load_dword v{r+5}, v{r+4}, s[20:21]')
        if self.LD and self.LDP == 1:
            down()
        for k in range(512 // n // 8):
            if k:
                e(f'v_add_u32 v{r}, {8*2752}, v{r}')
            e(f'global_load_dword v{r+2}, v{r}, s[16:17]'); e(f'global_load_dword v{r+3}, v{r}, s[18:19]')
        if self.LD and self.LDP == 2:
            down()
        self.fin()
        e('L_nogp:')

    def gp_s(self, gr, skip):
        e = self.e
        r, d = gr
        e(f's_sub_u32 s67, s2, {self.G0}'); e('s_cmp_lt_u32 s67, 128'); e(f's_cbranch_scc0 {skip}')
        e('s_and_b32 s66, s2, 7'); self.f_first('s64', 's66', 's71')
        self.f_six('s66'); e('s_cselect_b32 s66, 5, 4')
        e(f'v_and_b32 v{r}, 7, v0'); e(f'v_min_u32 v{r}, s66, v{r}'); e(f'v_add_u32 v{r}, s64, v{r}')
        e('s_and_b32 s64, s67, 0xf8'); e('s_lshl_b32 s64, s64, 2'); e('s_lshl_b32 s66, s34, 3'); e('s_add_u32 s64, s64, s66')
        e(f'v_lshrrev_b32 v{r+1}, 3, v0'); e(f'v_add_u32 v{r+1}, s64, v{r+1}'); e(f'v_mul_u32_u24 v{r+1}, 2752, v{r+1}')
        e(f'v_lshl_add_u32 v{r}, v{r}, 6, v{r+1}')
        n = 2
        if self.LD and self.LDP == 1:
            self.gp_down(r + 2, d + 2); n = 3
        e(f'global_load_dword v{d}, v{r}, s[16:17]'); e(f'global_load_dword v{d+1}, v{r}, s[18:19]')
        if self.LD and self.LDP == 2:
            self.gp_down(r + 2, d + 2); n = 3
        return n

    def gp_down(self, r, d=None):
        e = self.e
        e('s_and_b32 s66, s2, 7'); self.f_first('s70', 's66', 's71')
        self.f_six('s66'); e('s_cselect_b32 s66, 6, 5'); e('s_lshl_b32 s66, s66, 8'); e('s_sub_u32 s66, s66, 1')
        e('s_lshr_b32 s71, s67, 3'); e('s_lshl_b32 s71, s71, 2'); e('s_add_u32 s71, s71, s34'); e('s_mul_i32 s71, s71, 24')
        e(f'v_min_u32 v{r}, 23, v0'); e(f'v_add_u32 v{r}, s71, v{r}'); e(f'v_min_u32 v{r}, s66, v{r}')
        e('s_lshl_b32 s70, s70, 15'); e(f'v_lshl_add_u32 v{r}, v{r}, 7, s70')
        e(f'global_load_dword v{r+1 if d is None else d}, v{r}, s[20:21]')

    def common(self):
        e = self.e
        if self.diag:
            e('s_mov_b32 s80, s100')
        e('s_lshr_b32 s32, s2, 5'); e('s_and_b32 s33, s2, 31')
        e('s_and_b32 s67, s2, 7'); e('s_lshr_b32 s68, s2, 3'); e('s_sub_u32 s68, s68, 26')
        self.f_first('s74', 's67', 's66'); e('s_add_u32 s74, s74, s68')
        self.f_six('s67'); e('s_cselect_b32 s66, 6, 5'); e('s_cmp_lt_u32 s68, s66'); e('s_cselect_b32 s74, s74, -1')
        e('s_cmp_lt_u32 s2, 48'); e('s_cselect_b32 s66, 2, 3'); e('s_cselect_b32 s72, 14+26, 42+26')
        e('s_cmp_lt_u32 s2, 16'); e('s_cselect_b32 s66, 1, s66'); e('s_cselect_b32 s72, 26, s72')
        e('s_lshl_b32 s66, s67, s66'); e('s_add_u32 s72, s72, s66'); e('s_add_u32 s72, s72, s68')
        self.srd(WS, 's30', 's31', WS_STAMP + 0x40000 if self.diag else WS_END)
        self.srd(SD, 's28', 's29', 256)

    def phase0_addr(self):
        e = self.e
        e('s_and_b32 s67, s2, 7'); e('s_lshr_b32 s68, s2, 3')
        e('v_and_b32 v38, 7, v0'); e('v_lshrrev_b32 v37, 3, v0')
        e('s_cmp_eq_u32 s34, 0'); e('s_cbranch_scc0 L_p0a')
        e('s_mov_b32 s70, 6'); e('s_lshl_b32 s67, s67, 1'); e('s_add_u32 s66, s67, 14')
        e('v_min_u32 v38, %d, v38' % (1 if 'l' in self.abl else 5)); e('v_cmp_lt_u32 vcc, 1, v38'); e('v_add_u32 v36, s66, v38'); e('s_nop 0'); e('v_cndmask_b32 v38, v38, v36, vcc')
        e('s_branch L_p0b')
        e('L_p0a:')
        e('s_lshl_b32 s67, s67, 3'); e('s_lshl_b32 s65, s2, 3'); e('s_and_b32 s65, s65, 0xff'); e('s_lshr_b32 s66, s2, 5'); e('s_or_b32 s65, s65, s66')
        e('s_cmp_eq_u32 s34, 2'); e('s_cselect_b32 s70, 1, 8'); e('s_cselect_b32 s68, s65, s68'); e('s_cselect_b32 s67, 0, s67')
        e('L_p0b:')
        e('v_lshl_add_u32 v37, s68, 4, v37'); e('v_mul_u32_u24 v37, s70, v37')
        e('v_lshl_add_u32 v38, v37, 3, v38'); e('v_add_lshl_u32 v38, v38, s67, 7')
        e('s_lshl_b32 s70, s70, 13'); e('v_add_u32 v39, s70, v38')

    def phase0_issue(self):
        e = self.e
        l = self.lab('p0')
        e('s_cmp_eq_u32 s34, 3'); e(f's_cbranch_scc1 {l}')
        e('s_cmp_eq_u32 s34, 0'); e('s_cselect_b32 s62, s24, s10'); e('s_cselect_b32 s63, s25, s11')
        e('s_cmp_eq_u32 s34, 2'); e('s_cselect_b32 s62, s12, s62'); e('s_cselect_b32 s63, s13, s63')
        e('global_load_dword v12, v38, s[62:63]'); e('global_load_dword v13, v39, s[62:63]')
        e(f'{l}:')

    def phase0_ffn(self):
        e = self.e
        x, y = 's67', 's68'
        e(f's_and_b32 {x}, s2, 7'); e(f's_lshr_b32 {y}, s2, 3')
        self.f_first('s64', x, 's65')
        self.f_six(x); e('s_cselect_b32 s65, 6, 5')
        if 'd' in self.P3 and not self.LD:
            e(f's_mul_i32 s66, {y}, s65'); e('s_lshl_b32 s66, s66, 10'); e('s_lshl_b32 s69, s64, 15'); e('s_add_u32 s66, s66, s69')
            e('s_lshl_b32 s69, s65, 3'); e('s_sub_u32 s69, s69, 1'); e('v_min_u32 v16, s69, v0'); e('v_lshl_add_u32 v16, v16, 7, s66')
            e('global_load_dword v33, v16, s[20:21]')
        if 'f' in self.P3:
            n = int(self.P3[-1])
            e('s_sub_u32 s65, s65, 1'); e('v_and_b32 v16, 7, v0'); e('v_min_u32 v16, s65, v16'); e('v_add_u32 v16, s64, v16')
            e('v_lshrrev_b32 v17, 3, v0'); e(f'v_min_u32 v17, {n-1}, v17')
            e(f's_and_b32 s66, {y}, 7'); e(f's_mul_i32 s66, s66, {n}'); e(f's_lshr_b32 s69, {y}, 3'); e('s_lshl_b32 s69, s69, 7'); e('s_add_u32 s66, s66, s69')
            e('v_add_u32 v17, s66, v17'); e('v_mul_u32_u24 v17, 2752, v17'); e('v_lshl_add_u32 v16, v16, 6, v17')
            e('global_load_dword v34, v16, s[16:17]'); e('global_load_dword v35, v16, s[18:19]')

    def pclear(self):
        e = self.e
        assert WS_MOD == 0
        e('v_mov_b32 v4, -1'); e('v_mov_b32 v5, -1'); e('v_mov_b32 v6, -1'); e('v_mov_b32 v7, -1')
        e('s_and_b32 s66, s2, 7'); e('s_lshl_b32 s66, s66, 11'); e('s_and_b32 s65, s2, 8'); e('s_lshl_b32 s65, s65, 7'); e('s_add_u32 s66, s66, s65')
        e('v_add_u32 v8, s66, v1')
        e('global_store_dwordx4 v8, v[4:7], s[30:31] sc1')
        if self.PC:
            e('s_mov_b32 s77, 1')
            return
        e('s_lshl_b32 s66, s2, 2'); e('v_mov_b32 v3, s66')
        e('s_waitcnt vmcnt(0)')
        e('s_mov_b64 exec, 1')
        if 'Y' not in self.abl:
            e('global_store_dword v3, v4, s[28:29] sc1')
        e('s_mov_b64 exec, -1')
        self.stamp(10)

    def janitor(self):
        e = self.e
        e('v_mov_b32 v4, -1'); e('v_mov_b32 v5, -1'); e('v_mov_b32 v6, -1'); e('v_mov_b32 v7, -1')
        e('s_lshl_b32 s67, s64, 2'); e('s_add_u32 s67, s67, s34'); e('s_cmp_lt_u32 s67, 32'); e(f's_cselect_b32 s66, 0, {GAP}')
        e('s_mul_i32 s65, s67, 3072'); e('s_add_u32 s65, s65, s66'); e(f's_add_u32 s65, s65, {WS_BLK}')
        e('v_add_u32 v8, s65, v1')
        if 'c' not in self.abl:
            for k in range(3):
                e(f'global_store_dwordx4 v8, v[4:7], s[30:31] offset:{k*1024} {self.cflags}')
        e('s_and_b32 s66, s67, 64'); e('s_add_u32 s67, s67, s66'); e('s_lshl_b32 s67, s67, 7'); e(f's_add_u32 s67, s67, {WS_RACE}')
        e('v_and_b32 v8, 8, v0'); e('v_lshlrev_b32 v8, 10, v8'); e('v_and_b32 v10, 0x70, v1'); e('v_add3_u32 v8, v8, v10, s67')
        e('s_mov_b64 exec, 0xffff')
        e(f'global_store_dwordx4 v8, v[4:7], s[30:31] {self.cflags}')
        e('s_mov_b64 exec, 1')
        e(f's_load_dword s68, s[30:31], {WS_RACE - 0x100000:#x}')
        e('s_and_b32 s65, s34, 1'); e('s_lshl_b32 s66, s65, 13'); e('s_xor_b32 s67, s67, s66'); e('s_xor_b32 s66, s67, 0x2000')
        if self.P0 and self.JP:
            e('s_mov_b64 exec, -1'); self.phase0_issue(); e('s_mov_b64 exec, 1')
            l, l2 = self.lab('jp'), self.lab('jp')
            e('s_cmp_eq_u32 s34, 3'); e(f's_cbranch_scc1 {l}'); e('s_waitcnt vmcnt(2) lgkmcnt(0)'); e(f's_branch {l2}')
            e(f'{l}:'); e('s_waitcnt vmcnt(0) lgkmcnt(0)'); e(f'{l2}:')
        else:
            e('s_waitcnt vmcnt(0) lgkmcnt(0)')
            if self.P0:
                e('s_mov_b64 exec, -1'); self.phase0_issue(); e('s_mov_b64 exec, 1')
        for a, n in (('s67', 's70'), ('s66', 's71')):
            l = self.lab('race')
            e(f's_mov_b32 {n}, 0')
            e(f's_load_dword s68, s[30:31], {a}')
            e(f'{l}:')
            e('s_getreg_b32 s69, hwreg(HW_REG_IB_STS, 8, 4)'); e(f's_add_u32 {n}, {n}, 1'); e('s_cmp_eq_u32 s69, 0'); e(f's_cbranch_scc0 {l}')
            e('s_waitcnt lgkmcnt(0)')
        if self.diag == 1:
            e('s_add_u32 s91, s70, s100'); e('s_add_u32 s92, s71, s100')
        e('s_cmp_lt_u32 s71, s70'); e('s_cselect_b32 s70, 1, 0'); e('s_xor_b32 s70, s70, s65')
        e('s_getreg_b32 s69, hwreg(HW_REG_XCC_ID, 2, 1)'); e('s_xor_b32 s70, s70, s69'); e('s_lshl_b32 s69, s69, 14')
        e('s_lshl_b32 s70, s70, 8'); e('s_add_u32 s70, s70, s69'); e('s_add_u32 s70, s70, 1'); e('v_mov_b32 v9, s70')
        e('s_lshl_b32 s65, s64, 2'); e('v_mov_b32 v8, s65')
        e(f'ds_add_rtn_u32 v11, v2, v9 offset:{L_CNT}')
        e('s_waitcnt lgkmcnt(0)')
        e('v_add_u32 v11, v11, v9'); e('v_and_b32 v10, 0xff, v11'); e('v_cmp_eq_u32 vcc, 4, v10')
        l = self.lab('j')
        e(f's_cbranch_vccz {l}')
        if 'y' not in self.abl:
            e('global_store_dword v8, v11, s[28:29] offset:128 sc1')
        e(f'{l}:')
        e('s_mov_b64 exec, -1')
        self.stamp(10)

    def if_w(self, w, fn, other=None):
        e = self.e
        l = self.lab('w')
        e(f's_cmp_eq_u32 s34, {w}'); e(f's_cbranch_scc0 {l}')
        fn()
        if other:
            l2 = self.lab('w')
            e(f's_branch {l2}'); e(f'{l}:'); other(); e(f'{l2}:')
        else:
            e(f'{l}:')

    def h_wave(self):
        e = self.e
        e('; ---- helper waves: prefetch addresses, LDS init'); e('L_helper:')
        if 'H' in self.abl:
            e('s_endpgm')
        e(f's_setprio {self.hprio}')
        e('v_lshlrev_b32 v2, 2, v0')
        e('s_cmp_eq_u32 s3, 7'); e('s_cbranch_scc0 L_nopf')
        if self.prefetch:
            e('s_getpc_b64 s[60:61]')
            e('L_pc:')
            e('s_lshr_b32 s66, s2, 3'); e('s_lshl_b32 s66, s66, 10')
            e('v_add_u32 v10, s66, v1')
            e('v_min_u32 v10, L_code_end-L_pc-16, v10')
            e('global_load_dwordx4 v[12:15], v10, s[60:61]')
        e('v_sub_u32 v3, v0, 16'.replace('v_sub_u32 v3, v0, 16', 'v_subrev_u32 v3, 16, v0')); e('v_ashrrev_i32 v3, 31, v3')
        e(f'ds_write_b32 v2, v3 offset:{L_ML}')
        if self.OA:
            e('v_mov_b32 v4, 0'); e('v_mov_b32 v5, 0'); e('v_lshlrev_b32 v6, 3, v0')
            e(f'ds_write_b64 v6, v[4:5] offset:{L_OP}')
        e('L_nopf:')
        if self.P0:
            self.phase0_addr()
        e('s_sub_u32 s64, s2, 112'); e(f's_cmp_lt_u32 s64, {self.JC}')
        e('s_waitcnt lgkmcnt(0)')
        e('s_barrier')
        if 'J' not in self.abl:
            e('s_cbranch_scc1 L_jan')
        if self.P0:
            self.phase0_issue()
        e('L_nop0:')
        if self.PC:
            e('s_mov_b32 s77, 0')
        e('s_cmp_eq_u32 s34, 3'); e('s_cselect_b32 s64, 16, 0'); e('s_cmp_lt_u32 s2, s64'); e('s_cbranch_scc0 L_nopc')
        self.pclear()
        e('L_nopc:')
        self.if_w(3, lambda: self.phase0_ffn() if self.P3 else None)
        self.stamp(11)
        self.common()
        e('v_mov_b32 v9, 1')
        if 'q' in self.abl:
            e('s_branch L_norole')
        e('s_cmp_lt_u32 s2, 112'); e('s_cbranch_scc0 L_norole')
        self.gemm_role()
        e('s_branch L_waitq')
        e('L_jan:')
        self.janitor()
        e('s_branch L_nop0')
        e('L_norole:')
        e('s_cmp_eq_u32 s74, -1'); e('s_cbranch_scc1 L_waitq')
        self.ffn_slab(0, self.NPRE)
        e('; ---- w_down and wo -> LDS -> transposed MFMA operands'); e('L_waitq:')
        self.stamp(1)

        self.stamp(2)
        self.wo_load()
        if 't' not in self.abl:
            self.make_table()
        if 't' not in self.abl:
            self.red_preload()
        self.stamp(3)

        e('v_lshlrev_b32 v10, 3, v0')
        e('s_lshl_b32 s64, s34, 8'); e(f's_add_u32 s64, s64, {L_OB}')
        e('s_lshr_b32 s66, s68, 1'); e('v_xor_b32 v12, s66, v0'); e('v_mov_b32 v14, 0')
        for i, pbit in enumerate(self.wperm):
            e(f'v_bfe_u32 v11, v12, {pbit-1}, 1'); e(f'v_lshl_or_b32 v14, v11, {i}, v14')
        e('v_and_b32 v11, 0x38, v14'); e('v_and_b32 v12, 1, v14'); e('v_lshl_add_u32 v11, v12, 2, v11')
        e('v_bfe_u32 v12, v14, 1, 2'); e('v_add_u32 v11, v11, v12'); e('v_lshl_add_u32 v11, v11, 2, s64')
        e('v_and_b32 v14, 1, v0'); e('v_and_b32 v12, 48, v0'); e('v_lshlrev_b32 v12, 1, v12'); e('v_lshl_add_u32 v12, v14, 4, v12')
        e('v_add_u32 v12, s64, v12')
        if self.OA:
            assert self.wperm == (1, 2, 3, 4, 5, 6) and not any(self.wcw) and not any(self.wcols)
            e('v_and_b32 v12, 48, v0'); e('v_lshlrev_b32 v12, 2, v12'); e('v_lshl_add_u32 v12, v14, 5, v12')
        e('v_mul_u32_u24 v15, 0xaaaa, v14'); e('v_add_u32 v15, 0x4444, v15')
        for i in range(64, 96):
            e(f'v_mov_b32 v{i}, 0')
        e('s_lshl_b32 s64, s34, 3'); e('s_lshr_b32 s64, s35, s64')
        e('v_bfe_u32 v13, v0, 3, 1'); e('v_lshlrev_b32 v13, 2, v13'); e('v_bfe_u32 v13, s64, v13, 3')
        e('v_and_b32 v14, 0x70, v1'); e('v_lshl_add_u32 v13, v13, 12, v14')
        if self.SK:
            e('s_lshl_b32 s64, s34, 2'); e('s_add_u32 s64, s64, s33'); e('v_bfe_u32 v14, v0, 3, 1'); e('v_lshl_add_u32 v14, v14, 1, s64')
            e('v_and_b32 v14, 31, v14'); e('v_lshl_add_u32 v13, v14, 7, v13')
            e('s_lshl_b32 s69, s32, 15'); e(f's_add_u32 s69, s69, {WS_P1}')
        else:
            e('s_lshl_b32 s69, s32, 15')
            e('s_lshl_b32 s64, s33, 7'); e('s_add_u32 s69, s69, s64'); e(f's_add_u32 s69, s69, {WS_P1}')
        e('s_waitcnt vmcnt(0) lgkmcnt(0)')
        self.stamp(4)
        e('s_barrier')

    def ffn_slab(self, a, b, FD=None, v=16):
        e = self.e
        if a == b:
            return
        FD = FD or self.FD
        self.srd(SA, 's16', 's17', 512 * 2752)
        self.srd(SE, 's18', 's19', 512 * 2752)
        e(f'v_lshrrev_b32 v{v}, 2, v0'); e(f'v_mul_u32_u24 v{v}, 2752, v{v}')
        e(f'v_and_b32 v{v+1}, 3, v0'); e(f'v_lshrrev_b32 v{v+2}, 5, v0'); e(f'v_xor_b32 v{v+1}, v{v+1}, v{v+2}')
        e(f'v_xor_b32 v{v+2}, 2, v{v+1}')
        e(f'v_lshl_add_u32 v{v+1}, v{v+1}, 4, v{v}'); e(f'v_lshl_add_u32 v{v+2}, v{v+2}, 4, v{v}')
        e(f's_mul_i32 s64, s34, {128*2752}'); e('s_lshl_b32 s65, s74, 6'); e('s_add_u32 s64, s64, s65')
        e('s_lshl_b32 s65, s34, 13')
        if 'F' in self.abl:
            e('v_mov_b32 v17, v1'); e('v_mov_b32 v18, v1'); e('s_lshl_b32 s64, s74, 15'); e('s_add_u32 s64, s64, s65')
        for i in range(a, b):
            if 'f' in self.abl:
                continue
            t, m = i >> 1, i & 1
            if i - a >= FD:
                e(f's_waitcnt vmcnt({FD-1})')
            e(f's_add_u32 m0, s65, {L_BIG + m*32768 + t*1024}')
            e(f's_add_u32 s66, s64, {t*1024 if "F" in self.abl else t*16*2752}')
            e(f'buffer_load_dwordx4 v{v+1+m}, {SE if m else SA}, s66 offen {self.fflags} lds')

    def colmap(self):
        e = self.e
        e('v_and_b32 v5, 15, v0'); e('v_and_b32 v6, 16, v0'); e('v_lshl_add_u32 v5, v6, 1, v5')
        e('v_and_b32 v6, 32, v0'); e('v_lshrrev_b32 v6, 1, v6'); e('v_add_u32 v5, v5, v6')
        e('v_lshlrev_b32 v5, 1, v5'); e('v_and_b32 v6, 0x7c, v5')

    def red_preload(self):
        e = self.e
        l = self.lab('rp')
        e('s_sub_u32 s64, s2, 144'); e('s_cmp_lt_u32 s64, 64'); e(f's_cbranch_scc0 {l}')
        e('s_cmp_eq_u32 s34, 0'); e(f's_cbranch_scc0 {l}')
        self.srd(SC, 's4', 's5', 8192)
        self.colmap()
        e('s_lshl_b32 s65, s64, 7'); e('s_and_b32 s66, s65, 0x380')
        e('s_lshr_b32 s64, s64, 3'); e(f's_mul_i32 s64, s64, {BP}'); e('s_add_u32 s64, s64, s66'); e(f's_add_u32 s64, s64, {WS_BLK + 8192}')
        e(f'buffer_load_ushort v18, v5, {SC}, s65 offen')

        def gissue():
            for i, off in enumerate((0, 3072)):
                e(f'buffer_load_dword v{19+i}, v6, {WS}, s64 offen offset:{off} sc1')
        self.poll(gissue, 's_waitcnt vmcnt(0)', lambda: self.sent_check([19, 20], 16), sleep=self.flagsleep)
        e('v_and_b32 v16, 1, v0'); e('v_lshlrev_b32 v16, 4, v16'); e('v_xor_b32 v16, 16, v16')
        e('v_lshlrev_b32 v18, 16, v18')
        for i in (19, 20):
            e(f'v_lshlrev_b32 v{i}, v16, v{i}'); e(f'v_and_b32 v{i}, 0xffff0000, v{i}')
        for k in range(3):
            e(f'ds_write_b32 v2, v{18+k} offset:{L_BIG + 256*k}')
        e(f'{l}:')

    def wo_load(self):
        e = self.e
        HD0, HD = self.HD, max(self.HD, self.HDF)
        e('s_cmp_eq_u32 s74, -1'); e('s_cselect_b64 vcc, 0, -1'); e('s_cmp_lt_u32 s2, 112'); e('s_cselect_b64 vcc, -1, vcc')
        self.srd(SB, 's12', 's13', 4096 * 1024)
        e('v_lshrrev_b32 v18, 4, v0'); e('v_and_b32 v16, 15, v0'); e('v_xor_b32 v16, v16, v18'); e('v_xor_b32 v17, 4, v16')
        e('v_lshlrev_b32 v19, 10, v18'); e('v_lshl_add_u32 v22, v16, 4, v19'); e('v_lshl_add_u32 v23, v17, 4, v19')
        wp = self.wperm
        e('v_and_b32 v19, 1, v18'); e('v_lshlrev_b32 v19, 10, v19'); e('v_lshrrev_b32 v18, 1, v18'); e(f'v_lshl_add_u32 v18, v18, {10+wp[0]}, v19')
        e('v_lshl_add_u32 v16, v16, 4, v18'); e('v_lshl_add_u32 v17, v17, 4, v18')
        e('v_lshrrev_b32 v18, 4, v0')
        e('v_bfe_u32 v19, v0, 2, 2')
        e('v_and_b32 v20, 2, v0'); e('v_lshlrev_b32 v20, 2, v20')
        e('v_xor_b32 v20, v20, v19')
        e('v_and_b32 v21, 1, v18'); e('v_lshlrev_b32 v21, 2, v21'); e('v_xor_b32 v20, v20, v21')
        e('v_lshlrev_b32 v20, 4, v20')
        e('v_lshl_add_u32 v20, v18, 10, v20'); e('v_lshl_add_u32 v20, v19, 8, v20')
        e('v_and_b32 v21, 1, v0'); e('v_lshl_add_u32 v20, v21, 3, v20')
        e('s_lshl_b32 s65, s34, 13'); e(f's_add_u32 s65, s65, {L_BIG + 4096}')
        assert self.NPRE + self.NS <= 8
        e('v_add_u32 v40, s65, v20')
        for T in range(1, 8):
            e(f'v_xor_b32 v{40+T}, {16*T}, v40')

        def stage(srd, sbase, nk, dst, va, wp, HD0, HD):
            n = 8 * nk

            def tr(hh):
                j, t = hh >> 1, hh & 1
                for T in range(8):
                    d = dst + (((j >> 1) * 8 + T) * 8 + (j & 1) * 4 if nk > 1 else T * 4) + 2 * t
                    e(f'ds_read_b64_tr_b16 v[{d}:{d+1}], v{40+T} offset:{t*32768}')
            done = 0
            for q in range(n):
                j, t, g = q >> 3, (q >> 2) & 1, q & 3
                if HD0 < HD and q >= HD0:
                    l = self.lab('hd')
                    e(f's_cbranch_vccnz {l}'); e(f's_waitcnt vmcnt({HD0-1})'); e(f'{l}:')
                if q >= HD:
                    e(f's_waitcnt vmcnt({HD-1})')
                while 4 * done + 3 <= q - HD:
                    tr(done); done += 1
                if q >= 8 and g == 0:
                    assert done >= (q >> 2) - 1
                    e('s_waitcnt lgkmcnt(0)')
                if nk > 1 and q == 26 and 't' not in self.abl:
                    e(f'v_and_b32 v24, {4*self.JC-1}, v2'); e(f'buffer_load_dword v25, v24, {SD}, 0 offen offset:128')
                e(f's_add_u32 m0, s65, {t*32768+g*1024}')
                row = (t << wp[1]) | ((g & 1) << wp[2]) | ((g >> 1) << wp[3]) | ((j & 1) << wp[4]) | ((j >> 1) << wp[5])
                e(f's_xor_b32 s66, {sbase}, {row*1024}')
                if 'w' not in self.abl and not ('W' in self.abl and nk > 1 and q >= 4) and not ('d' in self.abl and nk == 1): e(f'buffer_load_dwordx4 v{va+(g&1)}, {srd}, s66 offen {self.wflags} lds')
            e('s_waitcnt vmcnt(0)')
            while done < 2 * nk:
                tr(done); done += 1
            e('s_waitcnt lgkmcnt(0)')
        def down():
            lx = self.lab('nf')
            e('s_cmp_eq_u32 s74, -1'); e(f's_cbranch_scc1 {lx}')
            self.srd(SC, 's20', 's21', 1376 * 1024)
            e('s_lshl_b32 s64, s74, 15'); e('s_lshl_b32 s66, s34, 8'); e('s_add_u32 s64, s64, s66')
            stage(SC, 's64', 1, 96, 22, (1, 2, 3, 4, 5, 6), self.DD, self.DD)
            e(f'{lx}:')
        if self.downfirst and not self.LD:
            down()
        e('s_lshl_b32 s64, s33, 17'); e('s_lshl_b32 s66, s34, 8'); e('s_add_u32 s64, s64, s66')
        keep = 0x7e & ~(1 << wp[0])
        e('s_mov_b32 s68, 0')
        for reg, cs in (('s34', self.wcw), ('s2', self.wcols)):
            for b, c in enumerate(cs):
                if c & keep:
                    e(f's_bitcmp1_b32 {reg}, {b}'); e(f's_cselect_b32 s66, {c & keep}, 0'); e('s_xor_b32 s68, s68, s66')
        e('s_lshl_b32 s66, s68, 10'); e('s_add_u32 s64, s64, s66')
        stage(SB, 's64', 4, 128, 16, wp, HD0, HD)
        if not self.downfirst and not self.LD:
            down()

    def gemm_role(self):
        e = self.e
        A0, ACC, X = 128, 64, 192
        e('; ---- P / Q role: [8 x 512] @ [512 x 64]'); e('L_gemm:')
        e('v_and_b32 v16, 7, v0'); e('v_lshlrev_b32 v16, 10, v16')
        e('v_and_b32 v17, 8, v0'); e('v_lshl_add_u32 v16, v17, 3, v16')
        e('v_and_b32 v17, 48, v0'); e('v_add_u32 v16, v16, v17')
        e('s_lshl_b32 s67, s34, 8')
        e('v_lshrrev_b32 v19, 3, v0'); e('v_and_b32 v17, 2, v19'); e('v_and_b32 v18, 7, v0'); e('v_xor_b32 v17, v17, v18')
        e('v_xor_b32 v18, 4, v17'); e('v_lshlrev_b32 v17, 4, v17'); e('v_lshlrev_b32 v18, 4, v18')
        e('s_cmp_lt_u32 s2, 48'); e('s_cbranch_scc0 L_gq0')
        self.srd(SA, 's24', 's25', 512 * 6144)
        self.srd(SC, 's22', 's23', 8192)
        e('s_mov_b32 s70, 6144'); e('s_lshl_b32 s64, s72, 7')
        e('s_branch L_g1')
        e('L_gq0:')
        self.srd(SA, 's10', 's11', 512 * 8192)
        self.srd(SC, 's4', 's5', 8192)
        e('s_mov_b32 s70, 8192'); e('s_sub_u32 s64, s72, 48'); e('s_lshl_b32 s64, s64, 7')
        e('L_g1:')
        if 'G' in self.abl:
            e('s_mov_b32 s70, 128'); e('s_lshl_b32 s64, s64, 9')
        for u in range(2):
            e(f'buffer_load_dwordx4 v[{X+4*u}:{X+4*u+3}], v16, {SC}, s67 offen offset:{128*u}')
        e('v_mul_lo_u32 v19, s70, v19'); e('v_add_u32 v17, v17, v19'); e('v_add_u32 v18, v18, v19')
        e('s_lshl_b32 s66, s70, 7'); e('s_mul_i32 s66, s66, s34'); e('s_add_u32 s64, s64, s66')
        e('s_lshl_b32 s70, s70, 3')
        e('s_lshl_b32 s65, s34, 13'); e(f's_add_u32 s65, s65, {L_BIG}')
        e('s_cmp_lt_u32 s2, 16'); e(f's_cselect_b32 s71, 0, 2'); e('s_cmp_ge_u32 s2, 48'); e('s_cselect_b32 s71, 1, s71')
        for t in range(16):
            if t >= min(self.QD, self.PD):
                l = self.lab('pace')
                if t >= self.UD:
                    l0 = self.lab('pace')
                    e('s_cmp_eq_u32 s71, 0'); e(f's_cbranch_scc0 {l0}'); e(f's_waitcnt vmcnt({self.UD-1})'); e(f'{l0}:')
                if t >= self.QD:
                    e('s_cmp_eq_u32 s71, 0'); e(f's_cbranch_scc1 {l}'); e(f's_waitcnt vmcnt({self.QD-1})')
                e('s_cmp_eq_u32 s71, 2'); e(f's_cbranch_scc0 {l}'); e(f's_waitcnt vmcnt({self.PD-1})')
                e(f'{l}:')
            e(f's_add_u32 m0, s65, {(t&7)*1024 + (t>>3)*32768}')
            e('s_nop 0')
            if 'l' in self.abl:
                ll = self.lab('abl'); e('s_sub_u32 s68, s2, 16'); e('s_cmp_lt_u32 s68, 32'); e(f's_cbranch_scc1 {ll}')
            if 'g' not in self.abl: e(f'buffer_load_dwordx4 v{17+(t&1)}, {SA}, s64 offen {self.gflags} lds')
            if 'l' in self.abl:
                e(f'{ll}:')
            e('s_add_u32 s64, s64, s70')
        self.stamp(12)
        e('s_waitcnt vmcnt(16)')
        if self.PC:
            l = self.lab('pc')
            e('s_cmp_eq_u32 s77, 0'); e(f's_cbranch_scc1 {l}')
            e('s_lshl_b32 s66, s2, 2'); e('v_mov_b32 v20, s66'); e('v_mov_b32 v21, -1'); e('s_mov_b64 exec, 1')
            e('global_store_dword v20, v21, s[28:29] sc1')
            e('s_mov_b64 exec, -1')
            self.stamp(10)
            e(f'{l}:')
        self.stamp(13)
        e('s_cmp_eq_u32 s34, %d' % (9 if 'b' in self.abl else 0)); e('s_cselect_b32 s73, 48, 0x1000')
        e('v_and_b32 v30, 15, v0'); e('v_lshlrev_b32 v30, 2, v30')
        l = self.lab('fl')
        e('s_cmp_ge_u32 s2, s73'); e(f's_cbranch_scc0 {l}')
        e(f'buffer_load_dword v31, v30, {SD}, 0 offen sc1')
        e(f'{l}:')
        B = 48
        e('s_mov_b32 s68, 0xffff0000')
        e('s_cmp_lt_u32 s2, 48'); e('s_cbranch_scc0 L_gq1')
        e('s_mov_b32 s66, 0xbfb8aa3b')
        for i in range(8):
            e(f'v_lshlrev_b32 v20, 16, v{X+i}'); e(f'v_and_b32 v21, s68, v{X+i}')
            e('v_mul_f32 v22, s66, v20'); e('v_mul_f32 v23, s66, v21')
            e('v_exp_f32 v22, v22'); e('v_exp_f32 v23, v23'); e('s_nop 0')
            e('v_add_f32 v22, 1.0, v22'); e('v_add_f32 v23, 1.0, v23')
            e('v_rcp_f32 v22, v22'); e('v_rcp_f32 v23, v23'); e('s_nop 0')
            e('v_mul_f32 v20, v20, v22'); e('v_mul_f32 v21, v21, v23')
            e(f'v_cvt_pk_bf16_f32 v{B+i}, v20, v21')
        e('s_branch L_g2')
        e('L_gq1:')
        LN = 96
        e('v_and_b32 v32, 7, v0'); e('v_lshlrev_b32 v32, 2, v32')
        for i in range(8):
            e(f'v_lshlrev_b32 v{LN+2*i}, 16, v{X+i}'); e(f'v_and_b32 v{LN+2*i+1}, s68, v{X+i}')
        e(f'v_add_f32 v20, v{LN}, v{LN+1}')
        for i in range(2, 16):
            e(f'v_add_f32 v20, v20, v{LN+i}')
        e('s_nop 1')
        e(f'v_add_f32_dpp v20, v20, v20 row_ror:8 {DPPF}')
        self.allreduce_rows('v_add_f32', 20, 22)
        e('v_mul_f32 v20, 0x3c000000, v20')
        e('v_mov_b32 v21, 0')
        for i in range(16):
            e(f'v_sub_f32 v22, v{LN+i}, v20'); e('v_fmac_f32 v21, v22, v22')
        e('s_nop 1')
        e(f'v_add_f32_dpp v21, v21, v21 row_ror:8 {DPPF}')
        self.allreduce_rows('v_add_f32', 21, 22)
        e('v_lshlrev_b32 v22, 1, v32'); e('s_lshl_b32 s66, s34, 6'); e('v_add_u32 v23, s66, v22')
        e(f'ds_write_b64 v23, v[20:21] offset:{L_ST}')
        e('v_mov_b32 v23, 0')
        e('s_waitcnt lgkmcnt(0)')
        e('s_mov_b64 exec, 1')
        e(f'ds_add_u32 v23, v9 offset:{L_CNT2}')
        e('s_mov_b64 exec, -1')
        self.poll(lambda: e(f'ds_read_b32 v24, v23 offset:{L_CNT2}'), 's_waitcnt lgkmcnt(0)',
                  lambda: e('v_cmp_gt_u32 vcc, 4, v24'))
        for w in range(4):
            e(f'ds_read_b64 v[{112+2*w}:{113+2*w}], v22 offset:{L_ST+64*w}')
        e('s_waitcnt lgkmcnt(0)')
        e('v_add_f32 v20, v112, v114'); e('v_add_f32 v21, v116, v118'); e('v_add_f32 v20, v20, v21'); e('v_mul_f32 v20, 0x3e800000, v20')
        e('v_add_f32 v24, v113, v115'); e('v_add_f32 v21, v117, v119'); e('v_add_f32 v24, v24, v21')
        e('v_mov_b32 v21, 0')
        for w in range(4):
            e(f'v_sub_f32 v22, v{112+2*w}, v20'); e('v_fmac_f32 v21, v22, v22')
        e('v_fmac_f32 v24, 0x43000000, v21')
        e('v_mul_f32 v24, 0x3b000000, v24')
        self.ln_fin(20, 24)
        for i in range(16):
            e(f'v_sub_f32 v{LN+i}, v{LN+i}, v20'); self.rnd(LN + i, LN + i)
            e(f'v_mul_f32 v{LN+i}, v{LN+i}, v24'); self.rnd(LN + i, LN + i)

        e('L_g2:')
        l = self.lab('fl')
        e('s_cmp_ge_u32 s2, s73'); e(f's_cbranch_scc0 {l}')
        e('s_waitcnt vmcnt(0)'); e('v_cmp_eq_u32 vcc, 0, v31'); e(f's_cbranch_vccz {l}')
        self.poll(lambda: e(f'buffer_load_dword v31, v30, {SD}, 0 offen sc1'), 's_waitcnt vmcnt(0)',
                  lambda: e('v_cmp_eq_u32 vcc, 0, v31'), sleep=self.flagsleep)
        e(f'{l}:')
        e('v_mov_b32 v20, 0')
        self.if_w(0, lambda: e(f'ds_write_b32 v20, v9 offset:{L_FLG}'))
        self.stamp(14)
        self.stamp(15)
        e('v_lshrrev_b32 v18, 4, v0'); e('v_bfe_u32 v19, v0, 2, 2')
        e('v_lshrrev_b32 v20, 1, v19'); e('v_and_b32 v21, 1, v18'); e('v_lshl_add_u32 v20, v21, 1, v20')
        e('v_lshlrev_b32 v20, 5, v20')
        e('v_lshl_add_u32 v20, v18, 10, v20'); e('v_lshl_add_u32 v20, v19, 7, v20')
        e('v_and_b32 v21, 3, v0'); e('v_lshl_add_u32 v20, v21, 3, v20')
        e('v_add_u32 v40, s65, v20')
        for T in range(1, 4):
            e(f'v_xor_b32 v{40+T}, {32*T}, v40')
        for j in range(4):
            if self.PC:
                l, l2 = self.lab('pc'), self.lab('pc')
                e('s_cmp_eq_u32 s77, 0'); e(f's_cbranch_scc1 {l}')
                e(f's_waitcnt vmcnt({13-4*j}) lgkmcnt(0)'); e(f's_branch {l2}')
                e(f'{l}:'); e(f's_waitcnt vmcnt({12-4*j}) lgkmcnt(0)'); e(f'{l2}:')
            else:
                e(f's_waitcnt vmcnt({12-4*j}) lgkmcnt(0)')
            for T in range(4):
                for t in range(2):
                    d = A0 + (j * 4 + T) * 4 + 2 * t
                    e(f'ds_read_b64_tr_b16 v[{d}:{d+1}], v{40+T} offset:{(j&1)*4096+(j>>1)*32768+t*512}')
        e('s_waitcnt lgkmcnt(0)')
        self.stamp(16)
        e('s_cmp_eq_u32 s34, %d' % (9 if 'B' in self.abl else 2)); e('s_cselect_b32 s73, 16, 0x1000')
        e(f'v_and_b32 v30, {self.JC-1}, v0'); e('v_lshlrev_b32 v30, 2, v30')
        l = self.lab('fl')
        e('s_cmp_ge_u32 s2, s73'); e(f's_cbranch_scc0 {l}')
        e(f'buffer_load_dword v31, v30, {SD}, 0 offen offset:128 sc1')
        e(f'{l}:')
        e('s_cmp_lt_u32 s2, 48'); e('s_cbranch_scc1 L_g3')
        e('v_mov_b32 v20, 0')
        self.poll(lambda: e(f'ds_read_b32 v22, v20 offset:{L_FLG}'), 's_waitcnt lgkmcnt(0)',
                  lambda: e('v_cmp_eq_u32 vcc, 0, v22'), sleep=1)
        self.stamp(17)
        S, C = X, X + 8
        e('s_lshl_b32 s64, s34, 11'); e(f's_add_u32 s64, s64, {WS_MOD}'); e('s_add_u32 s66, s64, 8192')

        def modissue():
            for u in range(2):
                e(f'buffer_load_dwordx4 v[{S+4*u}:{S+4*u+3}], v1, {WS}, s64 offen offset:{1024*u} sc1')
                e(f'buffer_load_dwordx4 v[{C+4*u}:{C+4*u+3}], v1, {WS}, s66 offen offset:{1024*u} sc1')
        if 'A' in self.abl:
            pass
        elif 'a' in self.abl:
            modissue(); e('s_waitcnt vmcnt(0)')
        else:
            self.poll(modissue, 's_waitcnt vmcnt(0)', lambda: self.sent_check(range(S, S + 16), 22), sleep=self.modsleep)
        if self.diag == 1:
            e('s_add_u32 s88, s75, s100')
        self.stamp(6)
        for i in range(8):
            e(f'v_lshlrev_b32 v20, 16, v{C+i}'); e(f'v_and_b32 v21, s68, v{C+i}')
            e('v_add_f32 v20, 1.0, v20'); e('v_add_f32 v21, 1.0, v21')
            self.rnd(20, 20); self.rnd(21, 21)
            e(f'v_mul_f32 v20, v20, v{LN+2*i}'); e(f'v_mul_f32 v21, v21, v{LN+2*i+1}')
            self.rnd(20, 20); self.rnd(21, 21)
            e(f'v_lshlrev_b32 v22, 16, v{S+i}'); e(f'v_and_b32 v23, s68, v{S+i}')
            e('v_add_f32 v20, v20, v22'); e('v_add_f32 v21, v21, v23')
            e(f'v_cvt_pk_bf16_f32 v{B+i}, v20, v21')
        e('L_g3:')
        l = self.lab('fl')
        e('s_cmp_ge_u32 s2, s73'); e(f's_cbranch_scc0 {l}')
        e('s_waitcnt vmcnt(0)'); e('v_cmp_eq_u32 vcc, 0, v31'); e(f's_cbranch_vccz {l}')
        self.poll(lambda: e(f'buffer_load_dword v31, v30, {SD}, 0 offen offset:128 sc1'), 's_waitcnt vmcnt(0)',
                  lambda: e('v_cmp_eq_u32 vcc, 0, v31'), sleep=self.flagsleep)
        e(f'{l}:')
        e('s_nop 1')
        for u in range(2):
            for hi in range(2):
                for T in range(4):
                    a = A0 + ((2 * u + hi) * 4 + T) * 4
                    d = ACC + (hi * 4 + T) * 4
                    c = '0' if u == 0 else f'v[{d}:{d+3}]'
                    e(f'v_mfma_f32_16x16x32_bf16 v[{d}:{d+3}], v[{a}:{a+3}], v[{B+4*u}:{B+4*u+3}], {c}')
        e('v_and_b32 v20, 7, v0'); e(f'v_mul_u32_u24 v20, {RED_PITCH}, v20')
        e('v_and_b32 v21, 8, v0'); e('v_lshl_add_u32 v20, v21, 3, v20')
        e('v_and_b32 v21, 48, v0'); e('v_add_u32 v20, v20, v21')
        e(f's_mul_i32 s64, s34, {RED_W}'); e(f's_add_u32 s64, s64, {L_RED}'); e('v_add_u32 v20, s64, v20')
        e('s_nop 7')
        for s in range(2):
            for r in range(4):
                lo0, hi0 = ACC + (2 * s) * 4 + r, ACC + (4 + 2 * s) * 4 + r
                lo1, hi1 = ACC + (2 * s + 1) * 4 + r, ACC + (4 + 2 * s + 1) * 4 + r
                e(f'v_add_f32_dpp v{24+4*s+r}, v{hi0}, v{lo0} row_ror:8 row_mask:0xf bank_mask:0x3')
                e(f'v_add_f32_dpp v{24+4*s+r}, v{lo1}, v{hi1} row_ror:8 row_mask:0xf bank_mask:0xc')
            e(f'ds_write_b128 v20, v[{24+4*s}:{27+4*s}] offset:{128*s}')
        e('v_mov_b32 v20, 0')
        e('s_waitcnt lgkmcnt(0)')
        e('s_mov_b64 exec, 1')
        e(f'ds_add_u32 v20, v9 offset:{L_CNT}')
        e('s_mov_b64 exec, -1')
        self.stamp(18)
        e('s_cmp_eq_u32 s34, 0'); e('s_cbranch_scc0 L_waitq')
        e('s_cmp_lt_u32 s2, 16'); e('s_cbranch_scc0 L_gq2')
        e('v_and_b32 v21, 7, v0'); e('v_lshrrev_b32 v22, 4, v0'); e('v_and_b32 v23, 8, v0'); e('v_lshrrev_b32 v23, 1, v23')
        e('v_add_u32 v22, v22, v23')
        e('v_mov_b32 v23, v1')
        e('s_lshl_b32 s64, s72, 10'); e(f's_add_u32 s64, s64, {WS_MOD}')
        e('s_branch L_g4')
        e('L_gq2:')
        e('v_lshrrev_b32 v21, 3, v0'); e('v_and_b32 v22, 7, v0')
        e(f's_mov_b32 s64, {WS_BLK - 48*128}')
        e('s_cmp_lt_u32 s2, 48'); e(f's_cselect_b32 s64, {WS_BLK + 8192 - 16*128}, s64'); e(f's_mov_b32 s65, {BP}')
        e('v_mul_lo_u32 v23, s65, v21'); e('v_lshl_add_u32 v23, v22, 4, v23')
        e('s_lshl_b32 s66, s72, 7'); e('s_add_u32 s64, s64, s66')
        e('L_g4:')
        e(f'v_mul_u32_u24 v21, {RED_PITCH}, v21'); e('v_lshl_add_u32 v21, v22, 5, v21'); e(f'v_add_u32 v21, {L_RED}, v21')
        self.poll(lambda: e(f'ds_read_b32 v22, v20 offset:{L_CNT}'), 's_waitcnt lgkmcnt(0)',
                  lambda: e('v_cmp_gt_u32 vcc, 4, v22'))
        for w in range(4):
            for s in range(2):
                d = ACC + 8 * w + 4 * s
                e(f'ds_read_b128 v[{d}:{d+3}], v21 offset:{w*RED_W + 16*s}')
        self.stamp(19)
        e('s_waitcnt lgkmcnt(0)')
        for w in range(1, 4):
            for i in range(8):
                e(f'v_add_f32 v{ACC+i}, v{ACC+i}, v{ACC+8*w+i}')
        for i in range(4):
            e(f'v_cvt_pk_bf16_f32 v{24+i}, v{ACC+2*i}, v{ACC+2*i+1}')
        for i in range(4):
            e(f'v_min_u32 v{24+i}, -2, v{24+i}')
        if 'e' not in self.abl:
            e(f'buffer_store_dwordx4 v[24:27], v23, {WS}, s64 offen {self.pflags}')

    def ln_fin(self, mu, var):
        e = self.e
        self.rnd(var, var); self.rnd(mu, mu)
        e(f'v_add_f32 v{var}, 0x3727c5ac, v{var}')
        self.rnd(var, var)
        e(f'v_sqrt_f32 v{var}, v{var}'); e('s_nop 0')
        self.rnd(var, var)
        e(f'v_rcp_f32 v{var}, v{var}'); e('s_nop 0')

    def tail(self):
        e = self.e
        ACC, AOP = 64, 48
        self.ts(1)
        if self.OA:
            for k in range(4):
                e(f'ds_read_b128 v[{20+4*k}:{23+4*k}], v12 offset:{L_OP + 256*(k>>1) + 16*(k&1)}')
            e('s_waitcnt lgkmcnt(2)')
            for k in range(4):
                e(f'v_cvt_pk_bf16_f32 v{AOP+k}, v{20+2*k}, v{21+2*k}')
            e('s_waitcnt lgkmcnt(0)')
            for k in range(4, 8):
                e(f'v_cvt_pk_bf16_f32 v{AOP+k}, v{20+2*k}, v{21+2*k}')
        else:
            for w in range(4):
                e(f'ds_read_b64 v[{20+2*w}:{21+2*w}], v10 offset:{L_OP+512*w}')
            if self.GP == 5:
                l = self.lab('tk')
                e(f's_cmp_lt_u32 s2, {self.TKW}'); e(f's_cbranch_scc0 {l}')
                e('s_and_b32 s71, s2, 7'); e('s_lshl_b32 s71, s71, 9'); e(f's_add_u32 s71, s71, {WS_PRG + 256}')
                e('v_mov_b32 v28, 1'); e('s_mov_b64 exec, 1')
                e(f'buffer_atomic_add v28, off, {WS}, s71 sc0')
                e('s_mov_b64 exec, -1')
                e(f'{l}:')
            e('s_waitcnt lgkmcnt(2)')
            e('v_pk_add_f32 v[20:21], v[20:21], v[22:23]')
            e('s_waitcnt lgkmcnt(1)')
            e('v_pk_add_f32 v[20:21], v[20:21], v[24:25]')
            e('s_waitcnt lgkmcnt(0)')
            e('v_pk_add_f32 v[20:21], v[20:21], v[26:27]')
            e('v_cvt_pk_bf16_f32 v20, v20, v21')
            e('ds_write_b32 v11, v20')
            for j in range(2):
                e(f'ds_read_b128 v[{AOP+4*j}:{AOP+4*j+3}], v12 offset:{128*j}')
        sm = lambda j, T: e(f'v_smfmac_f32_16x16x64_bf16 v[{ACC+4*T}:{ACC+4*T+3}], v[{AOP+4*j}:{AOP+4*j+3}], v[{128+(j*8+T)*8}:{135+(j*8+T)*8}], v15')
        add = lambda T: e(f'v_add_f32 v{ACC+4*T}, v{ACC+4*T}, v{ACC+4*T+1}')
        cvt = lambda t: e(f'v_cvt_pk_bf16_f32 v{20+t}, v{ACC+8*t}, v{ACC+8*t+4}')
        if not self.OA:
            e('s_waitcnt lgkmcnt(1)')
        for T in range(4):
            sm(0, T)
        if not self.OA:
            e('s_waitcnt lgkmcnt(0)')
        for T in range(4):
            sm(1, T)
        for T in range(4, 8):
            sm(0, T)
        sm(1, 4); add(0); sm(1, 5); add(1); add(2); sm(1, 6); add(3); cvt(0); sm(1, 7); cvt(1)
        add(4); e('s_mov_b64 exec, 0xffff'); add(5); cvt(2); e('s_nop 0'); add(6); e('s_nop 0'); add(7); cvt(3)
        e(f'buffer_store_dwordx4 v[20:23], v13, {WS}, s69 offen sc1')
        e('s_mov_b64 exec, -1')
        self.ts(2)
        self.stamp(5)
        if self.GP == 2:
            self.gp()
        if self.GP == 5:
            self.gp_ticket()
        e('; ---- tail dispatch; reducer'); e('L_tail_s:')
        e('s_cmp_eq_u32 s74, -1'); e('s_cbranch_scc0 L_ffn')
        e('s_cmp_eq_u32 s3, 0'); e('s_cbranch_scc0 L_fin')
        e('s_sub_u32 s70, s2, 144'); e('s_cmp_lt_u32 s70, 64'); e('s_cbranch_scc0 L_fin')
        self.reducer()
        e('L_fin2:')
        self.fin()
        self.ffn()

    def gu_addr(self):
        e = self.e
        e('v_lshrrev_b32 v18, 4, v0'); e('v_bfe_u32 v19, v0, 2, 2'); e('v_bfe_u32 v20, v0, 1, 1')
        e('v_and_b32 v22, 1, v18'); e('v_lshl_add_u32 v22, v20, 1, v22'); e('v_xor_b32 v22, s34, v22')
        e('v_lshlrev_b32 v22, 4, v22'); e('v_lshl_add_u32 v22, v20, 15, v22')
        e('v_lshl_add_u32 v22, v18, 9, v22'); e('v_lshl_add_u32 v22, v19, 6, v22')
        e('v_and_b32 v20, 1, v0'); e('v_lshl_add_u32 v22, v20, 3, v22'); e(f'v_add_u32 v22, {L_BIG}, v22')

    def gu_read(self, a, b):
        e = self.e
        l = self.lab('gu')
        e('s_cmp_eq_u32 s73, 0'); e(f's_cbranch_scc1 {l}')
        for i in range(a, b):
            if i > a and (i - a) % 11 == 0:
                e('s_waitcnt lgkmcnt(4)')
            e(f'ds_read_b64_tr_b16 v[{128+2*i}:{129+2*i}], v22 offset:{2048*(i>>1)+256*(i&1)}')
        if self.LD and self.LDR != 3:
            for T in range(8):
                e(f'v_add_u32 v{68+T}, {L_DN - L_BIG - 4096}, v{40+T}')
            if self.LDR == 0:
                e('s_waitcnt lgkmcnt(0)')
                for i in range(16):
                    if i == 11:
                        e('s_waitcnt lgkmcnt(4)')
                    e(self.dn_read(i))
        e(f'{l}:')

    def dn_dma(self, a=0, b=8, setup=True):
        e = self.e
        if setup:
            self.dn_setup()
        for q in range(a, b):
            t, g = q >> 2, q & 3
            e(f's_add_u32 m0, s77, {t*4096+g*1024}')
            e(f's_xor_b32 s66, s76, {(4*t + 8*(g&1) + 16*(g>>1))*1024}')
            if 'd' not in self.abl:
                e(f'buffer_load_dwordx4 v{22+(g&1)}, {SC}, s66 offen {self.wflags} lds')

    def dn_setup(self):
        e = self.e
        if self.LDS_ is not None:
            e(f's_setprio {self.LDS_}')
        self.srd(SC, 's20', 's21', 1376 * 1024)
        e('v_lshrrev_b32 v18, 4, v0'); e('v_and_b32 v16, 15, v0'); e('v_xor_b32 v16, v16, v18'); e('v_xor_b32 v17, 4, v16')
        e('v_lshlrev_b32 v19, 10, v18'); e('v_lshl_add_u32 v22, v16, 4, v19'); e('v_lshl_add_u32 v23, v17, 4, v19')
        e('s_lshl_b32 s76, s74, 15'); e('s_lshl_b32 s66, s34, 8'); e('s_add_u32 s76, s76, s66')
        e('s_lshl_b32 s77, s34, 13'); e(f's_add_u32 s77, s77, {L_DN}')
        if self.LDR == 3:
            e('v_bfe_u32 v19, v0, 2, 2'); e('v_and_b32 v16, 2, v0'); e('v_lshlrev_b32 v16, 2, v16'); e('v_xor_b32 v16, v16, v19')
            e('v_and_b32 v17, 1, v18'); e('v_lshlrev_b32 v17, 2, v17'); e('v_xor_b32 v16, v16, v17'); e('v_lshlrev_b32 v16, 4, v16')
            e('v_lshl_add_u32 v16, v18, 10, v16'); e('v_lshl_add_u32 v16, v19, 8, v16')
            e('v_and_b32 v17, 1, v0'); e('v_lshl_add_u32 v16, v17, 3, v16'); e('v_add_u32 v68, s77, v16')
            for T in range(1, 8):
                e(f'v_xor_b32 v{68+T}, {16*T}, v68')

    def dn_read(self, i):
        T, t = i >> 1, i & 1
        return f'ds_read_b64_tr_b16 v[{96+4*T+2*t}:{97+4*T+2*t}], v{68+T} offset:{4096*t}'

    def rpoll(self, k, load, n, base, acc, d, first_wait, hook):
        e = self.e
        lp, lx = self.lab('rp'), self.lab('rx')
        e('s_mov_b32 s75, 0')
        e(first_wait)
        P = self.PP[k]
        if self.NQ[k]:
            ln, lz = self.lab('rn'), self.lab('rz')
            for r in range(P - 1):
                for i in range(n):
                    load(i)
                e(f's_sleep {self.PG[k]}')
            e(f'{ln}:')
            for i in range(0, n, 2):
                e(f'v_smfmac_f32_16x16x64_bf16 v[{acc}:{acc+3}], v[44:47], v[{base+4*i}:{base+4*i+7}], v43')
            for i in range(n):
                load(i)
            e('s_add_u32 s75, s75, 1'); e('s_and_b32 s78, s75, 15')
            if n < 6:
                e(f's_nop {5-n}')
            for r in range(4):
                e(f'v_add_f32_dpp v{d}, v{acc+r}, v{acc+r} row_ror:8 row_mask:{0xc if r >> 1 else 0x3:#x} bank_mask:{0xc if r & 1 else 0x3:#x}')
            e(f'v_cmp_u_f32 vcc, v{d}, v{d}')
            e(f's_cbranch_vccz {lz}')
            for r in range(4):
                e(f'v_mov_b32 v{acc+r}, 0')
            e(f's_waitcnt vmcnt({n*(P-1)})')
            e(f's_cbranch_scc1 {ln}')
            self.sent_check(range(base, base + 4 * n), 2)
            e(f's_cbranch_vccz {lx}')
            e(f's_cmp_lt_u32 s75, {CAP:#x}'); e(f's_cbranch_scc1 {ln}')
            e(f'{lx}:')
            for i in range(0, n, 2):
                e(f'v_smfmac_f32_16x16x64_bf16 v[{acc}:{acc+3}], v[44:47], v[{base+4*i}:{base+4*i+7}], v43')
            e('s_nop 7')
            for r in range(4):
                e(f'v_add_f32_dpp v{d}, v{acc+r}, v{acc+r} row_ror:8 row_mask:{0xc if r >> 1 else 0x3:#x} bank_mask:{0xc if r & 1 else 0x3:#x}')
            e(f'{lz}:')
            hook()
            return
        if P > 1:
            self.sent_check(range(base, base + 4 * n), 2)
            e(f's_cbranch_vccz {lx}')
            if self.PM[k]:
                e('s_mov_b64 exec, vcc')
            for r in range(P - 1):
                for i in range(n):
                    load(i)
                e(f's_sleep {self.PG[k]}')
        e(f'{lp}:')
        self.sent_check(range(base, base + 4 * n), 2)
        e(f's_cbranch_vccz {lx}')
        if self.PM[k]:
            e('s_mov_b64 exec, vcc')
        for i in range(n):
            load(i)
        e('s_add_u32 s75, s75, 1'); e(f's_cmp_lt_u32 s75, {CAP:#x}')
        e(f's_waitcnt vmcnt({n*(P-1)})')
        e(f's_cbranch_scc1 {lp}')
        e(f'{lx}:')
        if self.PM[k]:
            e('s_mov_b64 exec, -1')
        hook()
        for i in range(0, n, 2):
            e(f'v_smfmac_f32_16x16x64_bf16 v[{acc}:{acc+3}], v[44:47], v[{base+4*i}:{base+4*i+7}], v43')
        e('s_nop 7')
        for r in range(4):
            e(f'v_add_f32_dpp v{d}, v{acc+r}, v{acc+r} row_ror:8 row_mask:{0xc if r >> 1 else 0x3:#x} bank_mask:{0xc if r & 1 else 0x3:#x}')

    def reducer(self):
        e = self.e
        e('s_lshl_b32 s64, s70, 2'); e('s_lshr_b32 s67, s35, s64'); e('s_and_b32 s71, s67, 7')
        e('s_andn2_b32 s66, s70, 7'); e('s_add_u32 s66, s66, s71'); e('s_lshl_b32 s66, s66, 12'); e(f's_add_u32 s66, s66, {WS_P1}')
        p1load = lambda i: e(f'buffer_load_dwordx4 v[{16+4*i}:{19+4*i}], v1, {WS}, s66 offen offset:{1024*i} sc1')
        for i in range(4):
            p1load(i)
        for r in range(32, 36):
            e(f'v_mov_b32 v{r}, -1')
        e('s_and_b32 s64, s71, 6'); e('s_lshl_b32 s64, s64, 12'); e('s_and_b32 s65, s71, 1'); e('s_lshl_b32 s65, s65, 15'); e('s_or_b32 s64, s64, s65')
        e('s_lshr_b32 s65, s70, 3'); e('s_lshl_b32 s65, s65, 16'); e('s_add_u32 s64, s64, s65')
        if self.SK:
            e('s_lshr_b32 s65, s70, 4'); e('s_lshl_b32 s65, s65, 2'); e('s_and_b32 s67, s70, 7'); e('s_add_u32 s65, s65, s67')
            e('s_lshl_b32 s65, s65, 7'); e('s_add_u32 s64, s64, s65')
        e(f's_add_u32 s64, s64, {WS_P2}'); e('s_add_u32 s65, s64, 4096')
        for i in range(6):
            if i == 5:
                e('s_mov_b64 exec, 0xffffff')
            if 'C' not in self.abl:
                e(f'buffer_store_dwordx4 v[32:35], v1, {WS}, s{64+(i>>2)} offen offset:{1024*(i&3)} sc1')
        e('s_mov_b64 exec, -1')
        e('v_lshlrev_b32 v2, 2, v0')
        for k in range(3):
            e(f'ds_read_b32 v{8+k}, v2 offset:{L_BIG + 256*k}')
        self.srd(SE, 's26', 's27', 8192)
        self.colmap()
        e('s_lshl_b32 s73, s70, 7')
        e('v_and_b32 v11, 1, v0'); e('v_lshlrev_b32 v3, 4, v11')
        e('v_mov_b32 v7, 0x3f80'); e('v_lshlrev_b32 v7, v3, v7')
        e('v_and_b32 v2, 4, v0'); e('v_cmp_eq_u32 vcc, 0, v2')
        e('v_bfe_u32 v2, v0, 1, 1'); e('v_mul_u32_u24 v43, 0xaaaa, v2'); e('v_add_u32 v43, 0x4444, v43')
        e('v_cndmask_b32 v44, 0, v7, vcc'); e('v_sub_u32 v45, v7, v44'); e('v_mov_b32 v46, v44'); e('v_mov_b32 v47, v45')
        for i in range(48, 56):
            e(f'v_mov_b32 v{i}, 0')
        e(f's_add_u32 s68, s73, {WS_X1}')
        e('s_mov_b32 s76, 0xaaaaaaaa'); e('s_mov_b32 s77, 0xaaaaaaaa')
        e('v_cmp_gt_u32 vcc, 24, v0'); e('v_mov_b32 v41, 0x40000000'); e('v_lshl_add_u32 v12, v11, 13, v6'); e('v_cndmask_b32 v41, v41, v1, vcc')
        self.rpoll(0, p1load, 4, 16, 48, 13, 's_waitcnt vmcnt(0) lgkmcnt(0)', lambda: (self.stamp(5), self.ts(3)))
        e('v_fmac_f32 v8, v13, v9')
        e('s_nop 1')
        e(f'v_mov_b32_dpp v14, v8 quad_perm:[1,1,3,3] {DPPF}')
        def wide(src, mask):
            e('s_nop 1')
            for k in range(1, 4):
                e(f'v_mov_b32_dpp v{src+k}, v{src} row_shl:{2*k} {DPPF}')
            e(f's_mov_b32 exec_lo, {mask:#x}'); e(f's_mov_b32 exec_hi, {mask:#x}')
        if self.X2 and self.X4[0]:
            e(f'v_mov_b32_dpp v13, v8 quad_perm:[0,0,2,2] {DPPF}')
            e('v_cvt_pk_bf16_f32 v56, v13, v14')
            wide(56, 0x03030303)
            e(f'buffer_store_dwordx4 v[56:59], v12, {WS}, s68 offen sc1')
            e('s_mov_b64 exec, -1')
        elif self.X2:
            e(f'v_mov_b32_dpp v13, v8 quad_perm:[0,0,2,2] {DPPF}')
            e('v_cvt_pk_bf16_f32 v13, v13, v14')
            e(f'buffer_store_dword v13, v12, {WS}, s68 offen sc1')
        else:
            e('s_not_b64 exec, s[76:77]')
            e('v_cvt_pk_bf16_f32 v13, v8, v14')
            e(f'buffer_store_dword v13, v6, {WS}, s68 offen sc1')
            e('s_mov_b64 exec, -1')
        self.rnd(8, 8)
        self.stamp(6)
        self.ts(4)
        p2load = lambda i: e(f'buffer_load_dwordx4 v[{64+4*i}:{67+4*i}], v{41 if i == 5 else 1}, {WS}, s{64+(i>>2)} offen offset:{1024*(i&3)} sc1')
        for i in range(6):
            p2load(i)
        self.rpoll(2, p2load, 6, 64, 52, 13, 's_waitcnt vmcnt(0)', lambda: (self.stamp(7), self.ts(5)))
        e('v_fmac_f32 v8, v13, v10')
        e('s_nop 1')
        e(f'v_mov_b32_dpp v14, v8 quad_perm:[1,1,3,3] {DPPF}')
        if self.X4[1]:
            e('v_cvt_pk_bf16_f32 v56, v8, v14')
            wide(56, 0x01010101)
            e(f'buffer_store_dwordx4 v[56:59], v6, {SE}, s73 offen {self.outflags}')
        else:
            e('s_not_b64 exec, s[76:77]')
            e('v_cvt_pk_bf16_f32 v13, v8, v14')
            if 'o' not in self.abl:
                e(f'buffer_store_dword v13, v6, {SE}, s73 offen {self.outflags}')
        if self.HP and self.HC:
            e('s_mov_b64 exec, -1'); e('s_cmp_lt_u32 s70, 8'); e('s_cbranch_scc0 L_fin2')
            e('s_mov_b64 exec, 0xffffff' if self.GP == 5 else 's_mov_b64 exec, 0xffff')
            e(f'buffer_store_dwordx4 v[44:47], v1, {WS}, s62 offen sc1')
        e('s_mov_b64 exec, -1')

    def ffn(self):
        e = self.e
        ACC = 64
        if self.AL:
            e('.p2align 7')
            for k in range(self.AL - 1):
                e('s_nop 0'); e('s_nop 0')
        e('; ---- FFN role'); e('L_ffn:')
        e(f's_mul_i32 s67, s3, {BP}'); e(f's_add_u32 s67, s67, {WS_BLK + 8192 + 1024}')
        e('v_lshlrev_b32 v7, 3, v0')
        if self.diag == 2:
            l = self.lab('dg'); e('s_cmp_lt_u32 s3, 4'); e(f's_cbranch_scc0 {l}'); self.ts(7); e(f'{l}:')

        def cissue():
            for i in range(2):
                e(f'buffer_load_dwordx4 v[{8+4*i}:{11+4*i}], v1, {WS}, s67 offen offset:{1024*i} sc1')
        cissue()
        npost = 16 - self.NPRE - self.NS - self.NT
        l, l2 = self.lab('post'), self.lab('post')
        e('s_cmp_lt_u32 s3, 4'); e(f's_cbranch_scc1 {l}')
        if self.GTF:
            self.gate(self.GTF, 28)
        self.ffn_slab(16 - npost, 16, 16)
        e(f's_waitcnt vmcnt({npost})')
        e(f's_branch {l2}')
        e(f'{l}:')
        self.ffn_slab(16 - npost - self.NT, 16 - npost, 16)
        if self.LD == 1:
            self.dn_dma()
        e(f's_waitcnt vmcnt({self.NT + (8 if self.LD == 1 else 0)})')
        self.ts(8)
        e(f'{l2}:')
        l = self.lab('cb')
        self.sent_check(range(8, 16), 16)
        e(f's_cbranch_vccz {l}')
        self.poll(cissue, 's_waitcnt vmcnt(0)', lambda: self.sent_check(range(8, 16), 16))
        e(f'{l}:')
        SBR, CBR = 24, 32
        e('s_mov_b32 s68, 0xffff0000')
        for i in range(4):
            e(f'v_lshlrev_b32 v{SBR+2*i}, 16, v{8+i}'); e(f'v_and_b32 v{SBR+2*i+1}, s68, v{8+i}')
            e(f'v_lshlrev_b32 v{CBR+2*i}, 16, v{12+i}'); e(f'v_and_b32 v{CBR+2*i+1}, s68, v{12+i}')
        for i in range(8):
            e(f'v_add_f32 v{CBR+i}, 1.0, v{CBR+i}')
        e('v_lshrrev_b32 v2, 3, v0'); e('v_bfe_u32 v3, v0, 1, 3'); e('v_and_b32 v4, 3, v3')
        e('s_lshl_b32 s64, s3, 1'); e('v_xor_b32 v3, s64, v3')
        e('v_lshlrev_b32 v5, 10, v2'); e('v_lshl_add_u32 v5, v4, 8, v5'); e('v_lshl_add_u32 v5, v3, 4, v5')
        e('v_and_b32 v4, 1, v0'); e('v_lshl_add_u32 v5, v4, 3, v5'); e(f'v_add_u32 v5, {L_H2}, v5'); e('v_xor_b32 v6, 16, v5')
        e('v_mul_u32_u24 v16, 0xaaaa, v4'); e('v_add_u32 v16, 0x4444, v16')
        e('v_lshrrev_b32 v2, 4, v0'); e('v_bfe_u32 v3, v0, 3, 1')
        e('v_xor_b32 v7, v2, v0'); e('v_lshlrev_b32 v7, 4, v7'); e(f'v_add_u32 v7, {L_H2}, v7'); e('v_xor_b32 v8, 64, v7')
        e('v_and_b32 v4, 7, v0'); e('v_and_b32 v9, 0x38, v0'); e('v_lshlrev_b32 v9, 3, v9'); e('v_lshl_add_u32 v9, v4, 1, v9')
        e('s_lshl_b32 s64, s34, 4'); e('v_add_u32 v9, s64, v9')
        e('v_and_b32 v10, 12, v0'); e('v_lshlrev_b32 v10, 5, v10'); e('v_and_b32 v4, 1, v0'); e('v_lshl_add_u32 v10, v4, 6, v10'); e('v_lshl_add_u32 v10, v2, 4, v10')
        e('v_mov_b32 v17, 0xbfb8aa3b')
        for i in range(4):
            e(f'v_mov_b32 v{ACC+i}, 0')
        e('s_lshl_b32 s64, s34, 3'); e('s_lshr_b32 s64, s35, s64'); e('v_lshlrev_b32 v3, 2, v3'); e('v_bfe_u32 v3, s64, v3, 3')
        e('v_and_b32 v11, 6, v3'); e('v_lshlrev_b32 v11, 12, v11'); e('v_and_b32 v3, 1, v3'); e('v_lshl_add_u32 v11, v3, 15, v11')
        e('v_lshl_add_u32 v11, v2, 17, v11'); e(f'v_and_b32 v4, {0xf0 if self.SK else 0x70}, v1'); e('v_add_u32 v11, v11, v4')
        if self.SK:
            e('v_lshl_add_u32 v11, v2, 9, v11'); e('s_lshl_b32 s64, s34, 8'); e('v_add_u32 v11, s64, v11')
        e('s_lshl_b32 s69, s74, 7'); e(f's_add_u32 s69, s69, {WS_P2}'); e('s_add_u32 s72, s69, 65536')
        e('s_lshl_b32 s64, s3, 10')
        if self.X2:
            e('s_lshl_b32 s65, s2, 2'); e('s_lshr_b32 s65, s35, s65'); e(f's_and_b32 s65, s65, 2'); e('s_lshl_b32 s65, s65, 12'); e('s_add_u32 s64, s64, s65')
        e(f's_add_u32 s64, s64, {WS_X1}')
        e('v_mov_b32 v14, 0xbb000000'); e('v_mov_b32 v15, 0x3b000000')
        X, Dd, DC = 56, 40, 48
        xload = lambda i: e(f'buffer_load_dwordx4 v[{X}:{X+3}], v1, {WS}, s64 offen sc1')
        self.gu_addr()
        e('s_lshr_b32 s73, s3, 2')
        if self.LD == 1 and self.LDW:
            l = self.lab('ldw'); e('s_cmp_lt_u32 s3, 4'); e(f's_cbranch_scc1 {l}'); e('s_waitcnt vmcnt(0)'); e(f'{l}:')
        else:
            e('s_waitcnt vmcnt(0)')
        if self.diag == 2:
            l = self.lab('dg'); e('s_cmp_lt_u32 s3, 4'); e(f's_cbranch_scc0 {l}'); self.ts(6); e(f'{l}:')
        e('s_barrier')
        self.stamp(8)
        self.ts(3)
        l = self.lab('x')
        if self.XF:
            xload(0)
        self.gu_read(0, 32)
        if self.TP is not None:
            e(f's_setprio {self.TP}')
        if self.LD == 2:
            l3, l4 = self.lab('dma'), self.lab('dma')
            e('s_cmp_lt_u32 s3, 4'); e(f's_cbranch_scc0 {l3}')
            self.dn_dma(0, self.LDQ)
            e(f's_waitcnt vmcnt({self.LDQ})'); e(f's_branch {l4}')
            e(f'{l3}:'); e('s_waitcnt vmcnt(0)'); e(f'{l4}:')
        e('s_mov_b32 s73, 0x3f803f80'); e('v_mov_b32 v20, 0'); e('v_mov_b32 v21, 0')
        if self.XF:
            if self.LD != 2:
                e('s_waitcnt vmcnt(0)')
            self.sent_check(range(X, X + 4), 12); e(f's_cbranch_vccz {l}')
        self.ppoll(1, xload, 1, X, 12)
        e(f'{l}:')
        self.stamp(6)
        self.ts(4)

        def dn_rest():
            l5 = self.lab('dma')
            e('s_cmp_lt_u32 s3, 4'); e(f's_cbranch_scc0 {l5}')
            self.srd(SC, 's20', 's21', 1376 * 1024)
            self.dn_dma(self.LDQ, 8, False)
            e(f'{l5}:')
        if self.LD == 2 and self.LDQ < 8 and self.LDX == 0:
            dn_rest()
        pr = lambda r: f'v[{r}:{r+1}]'
        if self.TP is not None:
            e('s_setprio 3')
        for i in range(4):
            e(f'v_dot2c_f32_bf16 v20, s73, v{X+i}'); e(f'v_dot2c_f32_bf16 v21, v{X+i}, v{X+i}')
        fill = []
        for i in range(4):
            fill += [f'v_lshlrev_b32 v{Dd+2*i}, 16, v{X+i}', f'v_and_b32 v{Dd+2*i+1}, s68, v{X+i}']
        fill += [f'v_pk_mul_f32 {pr(DC+i)}, {pr(Dd+i)}, {pr(CBR+i)}' for i in range(0, 8, 2)]

        def gap(n=2):
            for k in range(n):
                e(fill.pop(0) if fill else 's_nop 0')
        gap(3)
        e('v_permlane32_swap_b32 v20, v21')
        e('v_add_f32 v12, v20, v21'); gap()
        for dpp in ['quad_perm:[1,0,3,2]', 'quad_perm:[2,3,0,1]', 'row_ror:4', 'row_ror:8']:
            e(f'v_add_f32_dpp v12, v12, v12 {dpp} {DPPF}'); gap()
        e(f'v_add_f32_dpp v12, v12, v12 row_bcast:15 row_mask:0xa bank_mask:0xf'); e('s_nop 0')
        e('v_readlane_b32 s70, v12, 16'); e('v_readlane_b32 s71, v12, 48')
        e('s_nop 0')
        e('v_mul_f32 v12, s70, v14'); e('v_mul_f32 v13, s71, v15')
        e('v_fma_f32 v13, -v12, v12, v13'); e('v_max_f32 v13, 0, v13'); e('v_add_f32 v13, 0x3727c5ac, v13')
        e('v_rsq_f32 v2, v13')
        for i in range(0, 8, 2):
            e(f'v_pk_fma_f32 {pr(DC+i)}, v[12:13], {pr(CBR+i)}, {pr(DC+i)} op_sel_hi:[0,1,1]')
        for i in (0, 4, 2, 6):
            e(f'v_pk_fma_f32 {pr(SBR+i)}, v[2:3], {pr(DC+i)}, {pr(SBR+i)} op_sel_hi:[0,1,1]')
        e(f'v_cvt_pk_bf16_f32 v40, v{SBR}, v{SBR+1}'); e(f'v_cvt_pk_bf16_f32 v41, v{SBR+4}, v{SBR+5}')
        e('ds_write_b64 v5, v[40:41]')
        e(f'v_cvt_pk_bf16_f32 v42, v{SBR+2}, v{SBR+3}'); e(f'v_cvt_pk_bf16_f32 v43, v{SBR+6}, v{SBR+7}')
        e('ds_write_b64 v6, v[42:43]')
        if self.LD == 2 and self.LDQ < 8 and self.LDX == 1:
            dn_rest()
        e('s_cmp_lt_u32 s3, 4')
        if self.LD == 2 and self.LDR == 1:
            l = self.lab('dw')
            e(f's_cbranch_scc0 {l}'); e('s_waitcnt vmcnt(0)'); e(f'{l}:')
        e('s_waitcnt lgkmcnt(0)')
        self.ts(5)
        e('s_barrier')
        e('s_cbranch_scc1 L_bar_fin')
        self.ts(6)
        B = 192
        for j in range(8):
            e(f'ds_read_b128 v[{B+4*j}:{B+4*j+3}], v{7+(j&1)} offset:{1024*j}')
        for j in range(8):
            late = self.LD and self.LDR == 1
            e(f's_waitcnt lgkmcnt({7-j + (2*j if late else 0)})')
            e(f'v_smfmac_f32_16x16x64_bf16 v[{ACC}:{ACC+3}], v[{B+4*j}:{B+4*j+3}], v[{128+8*j}:{135+8*j}], v16')
            if late:
                e(self.dn_read(2 * j)); e(self.dn_read(2 * j + 1))
        e('s_nop 7')
        e(f'v_add_f32 v{ACC+2}, v{ACC+2}, v{ACC+3}'); e(f'v_add_f32 v{ACC}, v{ACC}, v{ACC+1}')
        e(f'v_mul_f32 v18, v{ACC}, v17')
        e(f'v_mul_f32_dpp v18, v{ACC+2}, v17 row_ror:8 row_mask:0xf bank_mask:0xc')
        e('v_exp_f32 v18, v18')
        e(f'v_mov_b32_dpp v{ACC+2}, v{ACC} row_ror:8 row_mask:0xf bank_mask:0x3')
        e('v_add_f32 v18, 1.0, v18')
        e('v_rcp_f32 v18, v18'); e('s_nop 0')
        e(f'v_mul_f32 v18, v18, v{ACC+2}')
        e('v_cvt_pk_bf16_f32 v18, v18, v18')
        e(f'ds_write_b16 v9, v18 offset:{L_HH}')
        e('s_waitcnt lgkmcnt(0)')
        self.ts(7)
        e('s_barrier')

        def down_gemm():
            e(f'ds_read_b128 v[48:51], v10 offset:{L_HH}')
            mm = lambda T: e(f'v_mfma_f32_16x16x32_bf16 v[{192+4*T}:{195+4*T}], v[48:51], v[{96+4*T}:{99+4*T}], 0')
            cv = lambda i, r: e(f'v_cvt_pk_bf16_f32 v{16+4*r+i}, v{192+8*i+r}, v{196+8*i+r}')
            if self.LD and self.LDR == 2:
                for i in range(12):
                    e(self.dn_read(i))
                w = lambda n: e(f's_waitcnt lgkmcnt({n})')
                w(10); mm(0); e(self.dn_read(12)); e(self.dn_read(13)); w(10); mm(1); e(self.dn_read(14)); e(self.dn_read(15)); w(10); mm(2)
                w(8); mm(3); w(6); mm(4); e('s_nop 0'); cv(0, 0); w(4); mm(5); cv(0, 1); w(2); mm(6)
                cv(1, 0); cv(1, 1); w(0); mm(7); e('s_nop 2'); cv(2, 0); cv(2, 1); e('s_nop 2'); cv(3, 0)
            else:
                e('s_waitcnt lgkmcnt(0)')
                mm(0); mm(1); mm(2); e('s_nop 1'); mm(3); e('s_nop 1'); mm(4); e('s_nop 0'); cv(0, 0); mm(5); cv(0, 1); mm(6)
                cv(1, 0); cv(1, 1); mm(7); e('s_nop 2'); cv(2, 0); cv(2, 1); e('s_nop 2'); cv(3, 0)
            e(f'buffer_store_dwordx4 v[16:19], v11, {WS}, s69 offen sc1')
            cv(3, 1)
            e(f'buffer_store_dwordx4 v[20:23], v11, {WS}, s72 offen sc1')
            self.stamp(7)
            self.ts(8)
            self.fin()
        if self.LD and self.LDR == 3:
            self.fin()
            e('L_bar_fin:')
            e('s_waitcnt vmcnt(0)')
            if self.LDN:
                e(f's_nop {self.LDN - 1}')
            for i in range(16):
                if i == 11:
                    e('s_waitcnt lgkmcnt(4)')
                e(self.dn_read(i))
            e('s_waitcnt lgkmcnt(0)')
            e('s_barrier')
            down_gemm()
        else:
            down_gemm()
            e('L_bar_fin:')
            if self.LD and self.LDR == 2:
                e('s_waitcnt vmcnt(0)')
            e('s_barrier')

def gen(**kw):
    return Gen(**kw).build()


if __name__ == '__main__':
    hdr = open(f'/code/{NAME}.s.ref').read().split('; Override launch')[0]
    out = sys.argv[1] if len(sys.argv) > 1 else f'/code/{NAME}.s'
    kw = {}
    for a in sys.argv[2:]:
        k, v = a.split('=')
        kw[k] = eval(v)
    open(out, 'w').write(hdr + gen(**kw))
```
